```python
import torch

def _softmax(x, axis=-1):
    return torch.softmax(x, dim=axis)
def _gelu(x):
    return torch.nn.functional.gelu(x, approximate="tanh")
def _silu(x):
    return torch.nn.functional.silu(x)
def _sigmoid(x):
    return torch.sigmoid(x)
def _layernorm(x, axis=-1, eps=1e-5):
    m = x.mean(dim=axis, keepdim=True)
    v = x.var(dim=axis, keepdim=True, unbiased=False)
    return (x - m) / torch.sqrt(v + eps)
def _scatter_add(tgt, idx, src, axis=0):
    return tgt.clone().index_add_(axis, idx, src)
def _segment_sum(src, seg, n):
    out = torch.zeros((n,) + src.shape[1:], dtype=src.dtype)
    return out.index_add_(0, seg, src)
def _pad(x, pw):
    flat = tuple(v for pair in reversed(pw) for v in pair)
    return torch.nn.functional.pad(x, flat)

kernel_name = 'recurrent_scan__spectral_gfnet__glu_gated_glu__prompt'

def setup_inputs():

    _w = (lambda a: (lambda t: t.to(torch.bfloat16) if t.is_floating_point() else t)(torch.as_tensor(a)))
    def _A_setup():
        B, S, D = 1, 2048, 576
        Df = D // 2 + 1
        return {
            "x": _w((lambda *s: torch.randn(*s, dtype=torch.bfloat16) * 0.05)(B, S, D)),
            "w_r": _w((lambda *s: torch.randn(*s, dtype=torch.bfloat16) * 0.05)(S, Df) * 0.02),
            "w_i": _w((lambda *s: torch.randn(*s, dtype=torch.bfloat16) * 0.05)(S, Df) * 0.02),
        }
    _A_in = _A_setup()

    def _B_setup():
        B, S, D, F = 1, 2048, 576, 4608
        return {
            "x": _w((lambda *s: torch.randn(*s, dtype=torch.bfloat16) * 0.05)(B, S, D)),
            "w_gate": _w((lambda *s: torch.randn(*s, dtype=torch.bfloat16) * 0.2)(D, F)),
            "w_up": _w((lambda *s: torch.randn(*s, dtype=torch.bfloat16) * 0.05)(D, F)),
            "w_down": _w((lambda *s: torch.randn(*s, dtype=torch.bfloat16) * 0.05)(F, D)),
        }
    _B_in = _B_setup()

    return {
        "A_x": _A_in["x"],
        "A_w_r": _A_in["w_r"],
        "A_w_i": _A_in["w_i"],
        "B_x": _B_in["x"],
        "B_w_gate": _B_in["w_gate"],
        "B_w_up": _B_in["w_up"],
        "B_w_down": _B_in["w_down"],
    }

def reference(A_x, A_w_r, A_w_i, B_x, B_w_gate, B_w_up, B_w_down):
    def _A_ref(x, w_r, w_i):
        B, S, D = x.shape
        X = (lambda x, axes=(-2,-1): torch.fft.rfft2(x.float(), dim=axes))(x, axes=(-2, -1))
        W = w_r + 1j * w_i
        X = X * W
        y = (lambda x, s, axes=(-2,-1): torch.fft.irfft2(x, s=s, dim=axes).to(torch.bfloat16))(X, (S, D), axes=(-2, -1))
        return y

    def _B_ref(x, w_gate, w_up, w_down):
        g = torch.einsum("bsd,df->bsf", x, w_gate)
        u = torch.einsum("bsd,df->bsf", x, w_up)
        h = _sigmoid(g) * u
        return torch.einsum("bsf,fd->bsd", h, w_down)

    x = A_x
    xn = _layernorm(x, axis=-1)
    s = _A_ref(xn, A_w_r, A_w_i)
    g = _silu(_B_ref(xn, B_w_gate, B_w_up, B_w_down))
    return x + s * g
```

```python
import re

class Asm:
    def __init__(self):
        self.lines = []
        self.vm = []
        self.lg = []
    def __call__(self, s):
        for ln in s.split("\n"):
            ln = ln.strip()
            if ln: self.lines.append(ln)
    def label(self, name): self.lines.append(name + ":")
    def comment(self, s): self.lines.append("; " + s)
    def vmem(self, s, tag):
        self(s); self.vm.append(tag)
    def lds(self, s, tag):
        self(s); self.lg.append(tag)
    def _need(self, q, tags):
        tags = set(tags); last = -1
        for i, t in enumerate(q):
            if t in tags: last = i
        return last
    def wait_vm(self, tags, force=False):
        last = self._need(self.vm, tags)
        if last < 0 and not force: return
        n = len(self.vm) - 1 - last
        assert n <= 63, n
        self(f"s_waitcnt vmcnt({n})"); self.vm = self.vm[last + 1:]
    def wait_lg(self, tags):
        last = self._need(self.lg, tags)
        if last < 0: return
        n = len(self.lg) - 1 - last
        if n > 15:
            n = 15; last = len(self.lg) - 1 - n
        self(f"s_waitcnt lgkmcnt({n})"); self.lg = self.lg[last + 1:]
    def wait_vm_all(self):
        self("s_waitcnt vmcnt(0)"); self.vm = []
    def wait_lg_all(self):
        self("s_waitcnt lgkmcnt(0)"); self.lg = []
    def text(self):
        out = []
        for ln in self.lines:
            out.append(ln if (ln.endswith(":") or ln.startswith(".") or ln.startswith(";")) else "    " + ln)
        return "\n".join(out) + "\n"

REG = re.compile(r"\b([vas])(\d+)\b|\b([vas])\[(\d+):(\d+)\]|\b(vcc|exec|m0|scc)\b")
def regs_of(op):
    out = set()
    for m in REG.finditer(op):
        if m.group(1): out.add((m.group(1), int(m.group(2))))
        elif m.group(3):
            for i in range(int(m.group(4)), int(m.group(5)) + 1): out.add((m.group(3), i))
        else: out.add((m.group(6), 0))
    return out
TRANS = ("v_exp_f32", "v_log_f32", "v_rcp_f32", "v_rsq_f32", "v_sqrt_f32", "v_sin_f32", "v_cos_f32", "v_rcp_iflag_f32")
def parse(ln):
    ln = ln.split(";")[0].strip()
    if not ln or ln.endswith(":") or ln.startswith("."): return None
    parts = ln.split(None, 1); mn = parts[0]; rest = parts[1] if len(parts) > 1 else ""
    ops = [o.strip() for o in re.split(r",(?![^\[]*\])", rest)] if rest else []
    d = dict(mn=mn, dst=set(), src=set(), kind="other", text=ln, ops=ops)
    def R(i): return regs_of(ops[i]) if i < len(ops) else set()
    allsrc = lambda a: set().union(*[regs_of(o) for o in ops[a:]]) if len(ops) > a else set()
    if mn.startswith("v_mfma"):
        d.update(kind="mfma", dst=R(0), srcA=R(1), srcB=R(2), srcC=R(3), src=R(1) | R(2) | R(3))
        d["passes"] = 8 if "32x32x16" in mn else 4 if "16x16x32" in mn else 16
    elif mn.startswith("v_cmp"):
        d.update(kind="valu", dst=R(0), src=allsrc(1))
        if mn.startswith("v_cmpx"): d["dst"] |= {("exec", 0)}
    elif mn.startswith("v_readfirstlane") or mn.startswith("v_readlane"):
        d.update(kind="valu", dst=R(0), src=allsrc(1), lane=True)
    elif mn.startswith("v_permlane") and "swap" in mn:
        d.update(kind="valu", dst=R(0) | R(1), src=R(0) | R(1), perm=True)
    elif mn.startswith("v_"):
        dst = R(0); src = allsrc(1)
        if mn.startswith(("v_add_co", "v_addc_co", "v_sub_co", "v_subb_co")): dst = R(0) | R(1); src = allsrc(2)
        if mn.startswith(("v_fmac", "v_dot2c", "v_pk_fmac")): src |= R(0)
        if mn.startswith("v_cndmask") and len(ops) == 3: src |= {("vcc", 0)}
        d.update(kind="valu", dst=dst, src=src, trans=mn.replace("_e32", "").replace("_e64", "") in TRANS,
                 dpp=any(k in ln for k in ("quad_perm", "row_", "wave_")))
    elif mn.startswith(("buffer_load", "global_load")):
        lds = " lds" in ln or "load_lds" in mn
        if lds: d.update(kind="vmem", src=allsrc(0) | {("m0", 0)}, ldsdma=True)
        else: d.update(kind="vmem", dst=R(0), src=allsrc(1))
    elif mn.startswith(("buffer_store", "global_store", "buffer_atomic", "global_atomic")):
        d.update(kind="vmem", src=allsrc(0), store=True)
        if mn.startswith("buffer_store"): d["data"] = R(0)
        elif mn.startswith("global_store"): d["data"] = R(1)
        d["wide"] = mn.endswith(("x3", "x4"))
    elif mn.startswith("ds_"):
        if mn.startswith(("ds_read", "ds_swizzle", "ds_bpermute", "ds_permute")): d.update(kind="ds", dst=R(0), src=allsrc(1))
        else: d.update(kind="ds", src=allsrc(0))
    elif mn.startswith("s_"):
        d["kind"] = "salu"
        if mn.startswith(("s_cmp", "s_waitcnt", "s_barrier", "s_nop", "s_branch", "s_cbranch", "s_endpgm", "s_setprio", "s_sleep")):
            d["src"] = allsrc(0)
        else: d.update(dst=R(0), src=allsrc(1))
        if mn == "s_nop": d["nop"] = int(ops[0], 0) + 1
        if "saveexec" in mn: d["dst"] |= {("exec", 0)}
    return d

def check_hazards(lines, name=""):
    ins = [p for p in (parse(l) for l in lines) if p]
    probs = []
    def states(i): return ins[i].get("nop", 1)
    for i, c in enumerate(ins):
        dist = 0
        for j in range(i - 1, max(i - 24, -1), -1):
            p = ins[j]
            need = 0; why = ""
            V = lambda s: {r for r in s if r[0] in "va"}
            Sg = lambda s: {r for r in s if r[0] == "s" or r[0] == "vcc"}
            if p["kind"] == "valu":
                w = p["dst"]
                if c["kind"] == "mfma" and V(w) & c["src"]: need, why = 2, "VALU->MFMA src"
                if c["kind"] == "valu" and c.get("lane") and V(w) & c["src"]: need, why = max(need, 1), "VALU->readlane"
                if c["kind"] == "valu" and c.get("perm") and V(w) & c["src"]: need, why = max(need, 2), "VALU->permlane"
                if c["kind"] == "valu" and c.get("dpp") and V(w) & c["src"]: need, why = max(need, 2), "VALU->DPP"
                if p.get("trans") and c["kind"] == "valu" and not c.get("trans") and V(w) & c["src"]: need, why = max(need, 1), "trans->VALU"
                if p.get("trans") and c["kind"] in ("vmem", "ds") and V(w) & c["src"]: need, why = max(need, 1), "trans->mem"
                if c["kind"] == "vmem" and Sg(w) & c["src"]: need, why = max(need, 5), "VALU sgpr->VMEM"
                if c["kind"] == "valu" and Sg(w) & c["src"]: need, why = max(need, 2), "VALU sgpr->VALU"
                if c["kind"] == "valu" and c.get("lane") and Sg(w) & c["src"]: need, why = max(need, 4), "VALU sgpr->lane sel"
                if ("exec", 0) in w and c["kind"] == "mfma": need, why = max(need, 4), "exec->mfma"
                if ("exec", 0) in w and c.get("dpp"): need, why = max(need, 5), "exec->dpp"
            if p["kind"] == "mfma":
                n = {4: 8, 8: 12, 16: 20}[p["passes"]]
                if c["kind"] == "mfma":
                    if p["dst"] & (c["srcA"] | c["srcB"]): need, why = n, "MFMA D->A/B"
                    elif p["dst"] & c["srcC"] and not (p["dst"] == c["srcC"] and p["passes"] == c["passes"]):
                        need, why = n - 2, "MFMA D->C partial"
                elif c["kind"] in ("valu", "vmem", "ds"):
                    if p["dst"] & (c["src"] | c["dst"]): need, why = n, "MFMA D->VALU/mem"
                    if c["kind"] == "valu" and p["srcC"] & c["dst"]: need, why = max(need, {4: 3, 8: 7, 16: 15}[p["passes"]]), "MFMA C WAR"
            if p["kind"] == "salu":
                if ("m0", 0) in p["dst"] and c.get("ldsdma"): need, why = 1, "m0->ldsdma"
                if ("exec", 0) in p["dst"] and c.get("dpp"): need, why = max(need, 0), ""
            if p["kind"] == "vmem" and p.get("store") and p.get("wide") and c["kind"] == "valu" and p["data"] & c["dst"]:
                need, why = max(need, 2), "wide store data WAR"
            if need > dist:
                probs.append(f"{name}: {why}: need {need} have {dist}: [{p['text']}] -> [{c['text']}]")
            dist += states(j)
            if dist >= 20: break
    return probs
```

```python
import os
from layout import *
STAMP = os.environ.get("STAMP") == "1"
def stamp(a, i, base=64):
    if STAMP:
        a(f"s_memtime s[{base+4*i}:{base+1+4*i}]\ns_memrealtime s[{base+2+4*i}:{base+3+4*i}]\ns_waitcnt lgkmcnt(0)")
        a.lg = []
def stamps_out(a, n, kidx, ws_srd, vt, base=64, nwaves=4):
    if not STAMP: return
    a("s_waitcnt vmcnt(0)")
    stamp(a, n - 1, base)
    a(f"v_lshrrev_b32 v{vt}, 6, v0\nv_lshl_add_u32 v{vt}, s2, 2, v{vt}\nv_lshlrev_b32 v{vt}, 6, v{vt}\nv_add_u32 v{vt}, {WS_END + kidx*0x40000}, v{vt}")
    a(f"s_mov_b32 s{ws_srd+2}, 0x10000000")
    for i in range(n):
        a(f"v_mov_b32 v{vt+1}, s{base+4*i}\nbuffer_store_dword v{vt+1}, v{vt}, s[{ws_srd}:{ws_srd+3}], 0 offen offset:{4*i}")
        a(f"v_mov_b32 v{vt+1}, s{base+2+4*i}\nbuffer_store_dword v{vt+1}, v{vt}, s[{ws_srd}:{ws_srd+3}], 0 offen offset:{32+4*i}")
```

```python
from asmlib import Asm
from layout import *

def allreduce32(a, v, t):
    for ctl in ("quad_perm:[1,0,3,2]", "quad_perm:[2,3,0,1]", "row_half_mirror", "row_mirror"):
        a("s_nop 1")
        a(f"v_add_f32_dpp v{v}, v{v}, v{v} {ctl} row_mask:0xf bank_mask:0xf")
    a(f"ds_swizzle_b32 v{t}, v{v} offset:0x401F")
    a("s_waitcnt lgkmcnt(0)")
    a(f"v_add_f32 v{v}, v{v}, v{t}")

def role_ln(a):
    srd(a, 8, 4, SZ_X); srd(a, 12, 6, WS_END)
    a("""
    v_lshrrev_b32 v1, 5, v0
    v_and_b32 v2, 31, v0
    s_lshr_b32 s16, s2, 2
    s_and_b32 s17, s2, 3
    s_lshl_b32 s17, s17, 3
    s_lshr_b32 s18, s16, 3
    s_and_b32 s19, s16, 7
    s_and_b32 s20, s18, 3
    s_lshl_b32 s20, s20, 3
    s_add_u32 s20, s20, s19
    s_lshr_b32 s21, s18, 2
    s_lshl_b32 s21, s21, 10
    s_add_u32 s20, s20, s21
    s_lshl_b32 s21, s17, 5
    s_add_u32 s20, s20, s21
    v_lshlrev_b32 v3, 5, v1
    v_add_u32 v3, s20, v3
    v_mul_u32_u24 v3, 1152, v3
    v_lshlrev_b32 v4, 4, v2
    v_add_u32 v3, v3, v4
    v_cmp_gt_u32 vcc, 24, v2
    v_mov_b32 v5, 0x7f000000
    s_nop 0
    v_cndmask_b32 v3, v5, v3, vcc
    buffer_load_dwordx4 v[8:11], v3, s[8:11], 0 offen
    buffer_load_dwordx4 v[12:15], v3, s[8:11], 0 offen offset:384
    buffer_load_dwordx4 v[16:19], v3, s[8:11], 0 offen offset:768
    """)
    a(f"""
    v_add_u32 v7, s17, v1
    v_lshrrev_b32 v6, 4, v7
    s_lshl_b32 s22, s16, 1
    v_add_u32 v6, s22, v6
    v_mul_u32_u24 v6, 18432, v6
    v_and_b32 v7, 15, v7
    v_and_b32 v44, 3, v2
    v_lshl_add_u32 v7, v44, 4, v7
    v_lshl_add_u32 v6, v7, 4, v6
    v_lshrrev_b32 v44, 2, v2
    v_lshl_add_u32 v6, v44, 10, v6
    v_add_u32 v6, {XN}, v6
    v_cndmask_b32 v6, v5, v6, vcc
    s_mov_b32 s23, 6144
    s_mov_b32 s24, 12288
    s_mov_b32 s25, 0x3ae38e39
    s_mov_b32 s26, 0x3727c5ac
    s_mov_b32 s27, 0xffff0000
    s_waitcnt vmcnt(0)
    """)
    X = 20
    for i in range(12):
        a(f"v_lshlrev_b32 v{X+2*i}, 16, v{8+i}\nv_and_b32 v{X+2*i+1}, s27, v{8+i}")
    for i in range(4): a(f"v_add_f32 v{44+i}, v{X+i}, v{X+4+i}")
    for k in range(2, 6):
        for i in range(4): a(f"v_add_f32 v{44+i}, v{44+i}, v{X+4*k+i}")
    a("v_add_f32 v44, v44, v45\nv_add_f32 v46, v46, v47\nv_add_f32 v44, v44, v46")
    allreduce32(a, 44, 45)
    a("v_mul_f32 v44, s25, v44")
    for i in range(4): a(f"v_sub_f32 v{48+i}, v{X+i}, v44")
    for i in range(4): a(f"v_mul_f32 v{52+i}, v{48+i}, v{48+i}")
    for k in range(1, 6):
        for i in range(4): a(f"v_sub_f32 v{48+i}, v{X+4*k+i}, v44")
        for i in range(4): a(f"v_fmac_f32 v{52+i}, v{48+i}, v{48+i}")
    a("v_add_f32 v52, v52, v53\nv_add_f32 v54, v54, v55\nv_add_f32 v52, v52, v54")
    a("v_cndmask_b32 v52, 0, v52, vcc")
    allreduce32(a, 52, 45)
    a("""
    v_mul_f32 v52, s25, v52
    v_cvt_pk_bf16_f32 v46, v44, v52
    v_lshlrev_b32 v44, 16, v46
    v_and_b32 v52, s27, v46
    v_add_f32 v52, s26, v52
    v_cvt_pk_bf16_f32 v52, v52, v52
    v_and_b32 v52, s27, v52
    v_sqrt_f32 v52, v52
    s_nop 0
    v_cvt_pk_bf16_f32 v52, v52, v52
    v_and_b32 v52, s27, v52
    v_rcp_f32 v52, v52
    """)
    for i in range(12):
        a(f"v_sub_f32 v{X+2*i}, v{X+2*i}, v44\nv_sub_f32 v{X+2*i+1}, v{X+2*i+1}, v44")
    for i in range(12):
        a(f"v_cvt_pk_bf16_f32 v{8+i}, v{X+2*i}, v{X+2*i+1}")
    for i in range(12):
        a(f"v_lshlrev_b32 v{X+2*i}, 16, v{8+i}\nv_and_b32 v{X+2*i+1}, s27, v{8+i}")
    for i in range(24):
        a(f"v_mul_f32 v{X+i}, v{X+i}, v52")
    for i in range(12):
        a(f"v_cvt_pk_bf16_f32 v{8+i}, v{X+2*i}, v{X+2*i+1}")
    a("""
    buffer_store_dwordx4 v[8:11], v6, s[12:15], 0 offen
    buffer_store_dwordx4 v[12:15], v6, s[12:15], s23 offen
    buffer_store_dwordx4 v[16:19], v6, s[12:15], s24 offen
    s_endpgm
    """)

def cosvals(a, n, first, step_reg, inv, phases, dst, tmp):
    for e in range(n):
        src = first if e == 0 else tmp
        if e == 1: a(f"v_add_f32 v{tmp}, v{first}, v{step_reg}")
        elif e > 1: a(f"v_add_f32 v{tmp}, v{tmp}, v{step_reg}")
        a(f"v_fma_f32 v{dst+e}, v{src}, {inv}, {phases[e]}")
        a(f"v_fract_f32 v{dst+e}, v{dst+e}")
        a(f"v_cos_f32 v{dst+e}, v{dst+e}")

def role_prep(a):
    srd(a, 8, 4, SZ_W); srd(a, 12, 6, WS_END); srd(a, 16, 28, SZ_W)
    a("""
    s_sub_u32 s20, s2, 256
    s_and_b32 s21, s20, 7
    s_lshr_b32 s22, s20, 3
    s_and_b32 s23, s21, 3
    s_lshr_b32 s24, s21, 2
    s_lshl_b32 s25, s23, 3
    s_and_b32 s26, s22, 7
    s_add_u32 s25, s25, s26
    s_lshr_b32 s26, s22, 3
    s_and_b32 s26, s26, 1
    s_lshr_b32 s27, s22, 4
    """)
    a("""
    s_lshl_b32 s30, s27, 10
    s_lshl_b32 s31, s24, 8
    s_add_u32 s30, s30, s31
    s_lshl_b32 s31, s26, 5
    s_add_u32 s30, s30, s31
    s_add_u32 s30, s30, s25
    s_mul_i32 s30, s30, 578
    """)
    for e in range(8):
        off = 36992 * (8 * (e // 4) + e % 4)
        a(f"s_add_u32 s{32+e}, s30, {off}")
    a(f"""
    s_lshl_b32 s40, s26, 12
    s_lshl_b32 s41, s27, 10
    s_add_u32 s40, s40, s41
    s_lshl_b32 s41, s24, 5
    s_add_u32 s41, s41, s25
    s_lshl_b32 s41, s41, 4
    s_add_u32 s40, s40, s41
    s_add_u32 s40, s40, {WT}
    s_add_u32 s41, s40, 2048
    v_lshlrev_b32 v1, 1, v0
    v_lshlrev_b32 v2, 13, v0
    v_lshrrev_b32 v3, 6, v0
    s_nop 0
    v_readfirstlane_b32 s42, v3
    """)
    for part, sr in ((0, 8), (1, 16)):
        for e in range(8):
            a(f"buffer_load_ushort v{8+8*part+e}, v1, s[{sr}:{sr+3}], s{32+e} offen")
    a("""
    s_cmp_lg_u32 s42, 0
    s_cbranch_scc1 K0_nohalf
    v_cmp_gt_u32 vcc, 33, v0
    v_mov_b32 v5, 0x7f000000
    v_add_u32 v4, 512, v1
    v_add_u32 v6, 0x200000, v2
    v_cndmask_b32 v4, v5, v4, vcc
    v_cndmask_b32 v6, v5, v6, vcc
    """)
    for part, sr in ((0, 8), (1, 16)):
        for e in range(8):
            a(f"buffer_load_ushort v{24+8*part+e}, v4, s[{sr}:{sr+3}], s{32+e} offen")
    a("s_waitcnt vmcnt(0)")
    for part in range(2):
        for i in range(4):
            a(f"v_lshl_or_b32 v{40+4*part+i}, v{24+8*part+2*i+1}, 16, v{24+8*part+2*i}")
    a("""
    buffer_store_dwordx4 v[40:43], v6, s[12:15], s40 offen
    buffer_store_dwordx4 v[44:47], v6, s[12:15], s41 offen
    """)
    a.label("K0_nohalf")
    a("""
    s_cmp_eq_u32 s42, 3
    s_cbranch_scc1 K0_small
    s_mul_i32 s43, s20, 162
    v_add_u32 v50, s43, v0
    v_lshrrev_b32 v51, 6, v50
    v_and_b32 v52, 63, v50
    v_mul_u32_u24 v53, 3641, v51
    v_lshrrev_b32 v53, 16, v53
    v_mul_u32_u24 v54, 18, v53
    v_sub_u32 v54, v51, v54
    v_and_b32 v55, 15, v52
    v_lshrrev_b32 v56, 4, v52
    s_mov_b32 s44, 0x3ae38e39
    v_lshlrev_b32 v57, 4, v50
    v_cmp_gt_u32 vcc, 162, v0
    v_mov_b32 v5, 0x7f000000
    s_nop 0
    v_cndmask_b32 v57, v5, v57, vcc
    """)
    a("""
    v_lshl_add_u32 v58, v53, 4, v55
    v_lshrrev_b32 v59, 1, v58
    v_and_b32 v60, 1, v58
    v_cmp_eq_u32 vcc, 1, v58
    v_mov_b32 v61, 288
    s_nop 0
    v_cndmask_b32 v59, v59, v61, vcc
    v_cndmask_b32 v60, v60, 0, vcc
    v_cvt_f32_u32 v60, v60
    v_mul_f32 v60, 0.25, v60
    v_lshlrev_b32 v61, 5, v54
    v_lshl_add_u32 v61, v56, 3, v61
    v_mul_u32_u24 v61, v61, v59
    v_cvt_f32_u32 v61, v61
    v_cvt_f32_u32 v59, v59
    """.replace("v_mul_f32 v60, 0.25, v60", "v_mul_f32 v60, 0x3e800000, v60"))
    a("s_nop 0")
    cosvals(a, 8, 61, 59, "s44", ["v60"] * 8, 64, 62)
    a("s_nop 0")
    for i in range(4): a(f"v_cvt_pk_bf16_f32 v{72+i}, v{64+2*i}, v{64+2*i+1}")
    a(f"s_mov_b32 s45, {FF}\nbuffer_store_dwordx4 v[72:75], v57, s[12:15], s45 offen")
    a("""
    v_lshl_add_u32 v58, v53, 4, v55
    v_lshlrev_b32 v59, 4, v54
    v_lshl_add_u32 v59, v56, 2, v59
    v_mul_u32_u24 v61, v59, v58
    v_cvt_f32_u32 v61, v61
    v_cvt_f32_u32 v58, v58
    v_cmp_eq_u32 vcc, 0, v59
    v_mov_b32 v60, 0x3e800000
    v_mov_b32 v63, 0
    """)
    for i in range(4):
        src = 61 if i == 0 else 62
        if i == 1: a("v_add_f32 v62, v61, v58")
        elif i > 1: a("v_add_f32 v62, v62, v58")
        for p in range(2):
            a(f"v_fma_f32 v{64+2*i+p}, v{src}, s44, v{60 if p else 63}")
            a(f"v_fract_f32 v{64+2*i+p}, v{64+2*i+p}")
            a(f"v_cos_f32 v{64+2*i+p}, v{64+2*i+p}")
    a("""
    v_cndmask_b32 v76, 2.0, 1.0, vcc
    v_cndmask_b32 v77, 2.0, 0, vcc
    v_mul_f32 v64, v64, v76
    v_mul_f32 v65, v65, v77
    """)
    for e in range(2, 8): a(f"v_add_f32 v{64+e}, v{64+e}, v{64+e}")
    for i in range(4): a(f"v_cvt_pk_bf16_f32 v{80+i}, v{64+2*i}, v{64+2*i+1}")
    a(f"s_mov_b32 s45, {FI}\nbuffer_store_dwordx4 v[80:83], v57, s[12:15], s45 offen")
    a("s_branch K0_wstore")
    a.label("K0_small")
    a(f"""
    s_cmp_ge_u32 s20, 86
    s_cbranch_scc1 K0_wstore
    v_and_b32 v52, 63, v0
    v_and_b32 v55, 31, v52
    v_lshrrev_b32 v56, 5, v52
    v_lshlrev_b32 v57, 4, v52
    s_lshl_b32 s45, s20, 10
    s_add_u32 s45, s45, {TAB}
    s_cmp_ge_u32 s20, 54
    s_cbranch_scc1 K0_tw
    """)
    a("""
    s_cmp_ge_u32 s20, 48
    s_cbranch_scc1 K0_f32
    s_cmp_ge_u32 s20, 24
    s_cselect_b32 s52, 24, 0
    s_sub_u32 s52, s20, s52
    s_lshr_b32 s46, s52, 3
    s_lshr_b32 s47, s52, 2
    s_and_b32 s47, s47, 1
    s_and_b32 s53, s52, 3
    s_lshl_b32 s48, s53, 4
    s_mov_b32 s54, 8
    s_mov_b32 s49, 63
    s_mov_b32 s50, 0x3c800000
    s_cmp_ge_u32 s20, 24
    s_cbranch_scc1 K0_f64
    s_lshr_b32 s48, s53, 1
    s_lshl_b32 s48, s48, 5
    s_and_b32 s53, s53, 1
    s_lshl_b32 s53, s53, 3
    s_add_u32 s48, s48, s53
    s_mov_b32 s54, 16
    s_branch K0_f64
    """)
    a.label("K0_f32")
    a("""
    s_sub_u32 s52, s20, 48
    s_lshr_b32 s46, s52, 1
    s_mov_b32 s47, 0
    s_and_b32 s48, s52, 1
    s_lshl_b32 s48, s48, 4
    s_mov_b32 s54, 8
    s_mov_b32 s49, 31
    s_mov_b32 s50, 0x3d000000
    """)
    a.label("K0_f64")
    a("""
    s_mov_b32 s51, 0
    s_cmp_eq_u32 s46, 1
    s_cselect_b32 s51, 0x3f400000, s51
    s_cmp_eq_u32 s46, 2
    s_cselect_b32 s51, 0x3e800000, s51
    s_lshl_b32 s47, s47, 5
    v_add_u32 v58, s47, v55
    v_lshlrev_b32 v59, 2, v56
    v_add_u32 v59, s48, v59
    v_add_u32 v62, s54, v59
    v_mov_b32 v60, s51
    """)
    for e in range(8):
        a(f"v_add_u32 v61, {e%4}, v{59 if e < 4 else 62}")
        a("v_mul_u32_u24 v61, v61, v58")
        a("v_and_b32 v61, s49, v61")
        a("v_cvt_f32_u32 v61, v61")
        a(f"v_fma_f32 v{64+e}, v61, s50, v60")
        a(f"v_fract_f32 v{64+e}, v{64+e}")
        a(f"v_cos_f32 v{64+e}, v{64+e}")
    a("s_nop 0")
    for i in range(4): a(f"v_cvt_pk_bf16_f32 v{72+i}, v{64+2*i}, v{64+2*i+1}")
    a("buffer_store_dwordx4 v[72:75], v57, s[12:15], s45 offen\ns_branch K0_wstore")
    a.label("K0_tw")
    a("""
    s_sub_u32 s46, s20, 54
    s_and_b32 s47, s46, 15
    s_lshr_b32 s48, s47, 3
    s_lshl_b32 s48, s48, 5
    s_lshr_b32 s49, s47, 2
    s_and_b32 s49, s49, 1
    s_and_b32 s50, s47, 3
    s_lshl_b32 s50, s50, 3
    s_cmp_ge_u32 s46, 16
    s_cselect_b32 s51, s48, 0
    s_cselect_b32 s52, 0, s48
    s_add_u32 s50, s50, s51
    s_cmp_eq_u32 s49, 1
    s_cselect_b32 s51, 0x3f400000, 0
    s_mov_b32 s53, 0x3a000000
    v_add_u32 v58, s52, v55
    v_lshlrev_b32 v59, 2, v56
    v_add_u32 v59, s50, v59
    v_mov_b32 v60, s51
    """)
    for x in range(4):
        a(f"v_add_u32 v61, {x}, v59")
        a("v_mul_u32_u24 v61, v61, v58")
        a("v_cvt_f32_u32 v61, v61")
        a(f"v_fma_f32 v{64+x}, v61, s53, v60")
        a(f"v_fract_f32 v{64+x}, v{64+x}")
        a(f"v_cos_f32 v{64+x}, v{64+x}")
    a("s_nop 0\nbuffer_store_dwordx4 v[64:67], v57, s[12:15], s45 offen")
    a.label("K0_wstore")
    a("s_waitcnt vmcnt(0)")
    for part in range(2):
        for i in range(4):
            a(f"v_lshl_or_b32 v{40+4*part+i}, v{8+8*part+2*i+1}, 16, v{8+8*part+2*i}")
    a("""
    buffer_store_dwordx4 v[40:43], v2, s[12:15], s40 offen
    buffer_store_dwordx4 v[44:47], v2, s[12:15], s41 offen
    s_endpgm
    """)

def k0(name="k0_kernel"):
    a = Asm()
    a(f"""
    s_cmp_ge_u32 s2, 512
    s_cbranch_scc1 K0_exit
    s_load_dwordx2 s[6:7], s[0:1], {K_WS}
    s_cmp_ge_u32 s2, 256
    s_cbranch_scc1 K0_prep
    s_load_dwordx2 s[4:5], s[0:1], {K_X}
    s_waitcnt lgkmcnt(0)
    """)
    role_ln(a)
    a.label("K0_prep")
    a(f"""
    s_load_dwordx2 s[4:5], s[0:1], {K_WR}
    s_load_dwordx2 s[28:29], s[0:1], {K_WI}
    s_waitcnt lgkmcnt(0)
    """)
    role_prep(a)
    a.label("K0_exit")
    a("s_endpgm")
    return a
```

```python
from asmlib import Asm
from layout import *
from common import *

STAGE = 20480
UPOFF = 9216
FFOFF = 18432
NR = 7
PW = 5
PX = 4
NXS = 6
LA = 3
NB = 5
NST = 18
V_TR, V_FFB, V_DMA, V_X, V_H, V_Y, V_T = 2, 5, 8, 13, 14, 15, 16
A_X, A_F = 96, 192

def acc(tau, i):
    blk = 4 * tau + i
    return ("v", 32 + 4 * blk) if blk < 56 else ("a", 4 * (blk - 56))
def accr(tau, i):
    f, b = acc(tau, i); return f"{f}[{b}:{b+3}]"
def xfrag(T, i):
    b = A_X + (T % NXS) * 16 + 4 * i; return f"a[{b}:{b+3}]"

S_SRD = {0: 8, 1: 8, 2: 20, 3: 12, 4: 24}
S_SRCW, S_SRC4 = 28, 29
S_DST = 33
S_INC4 = 38
S_X = 39
S_TMP = 43
S_K = 44
S_FG = 48
S_FT, S_MT, S_W = 53, 54, 52

def setup(a):
    a(f"""
    s_cmp_ge_u32 s2, 256
    s_cbranch_scc1 K1_exit
    s_load_dwordx2 s[4:5], s[0:1], {K_WG}
    s_load_dwordx2 s[6:7], s[0:1], {K_WU}
    s_load_dwordx2 s[50:51], s[0:1], {K_WS}
    v_and_b32 v1, 63, v0
    v_lshrrev_b32 v16, 6, v0
    s_and_b32 s55, s2, 7
    s_lshr_b32 s56, s2, 3
    v_readfirstlane_b32 s52, v16
    s_lshr_b32 s53, s55, 1
    s_lshl_b32 s53, s53, 3
    s_and_b32 s54, s56, 7
    s_add_u32 s53, s53, s54
    s_and_b32 s54, s55, 1
    s_lshl_b32 s54, s54, 2
    s_lshr_b32 s55, s56, 3
    s_add_u32 s54, s54, s55
    """)
    a(f"""
    s_lshl_b32 s55, s54, 4
    s_lshl_b32 s56, s52, 2
    s_add_u32 s55, s55, s56
    s_mul_i32 s56, s55, 18432
    s_add_u32 s56, s56, {XN}
    v_lshlrev_b32 v16, 4, v1
    v_add_u32 v{V_X}, s56, v16
    s_mul_i32 s56, s55, 147456
    s_add_u32 s56, s56, {H}
    v_add_u32 v{V_H}, s56, v16
    s_mov_b32 s{S_X}, 0
    s_mov_b32 s{S_X+1}, 18432
    s_mov_b32 s{S_X+2}, 36864
    s_mov_b32 s{S_X+3}, 55296
    s_mul_i32 s{S_FG}, s53, 9
    """)
    a("s_mul_i32 s55, s53, 288\ns_mov_b32 s61, 0xe38e38f")
    for i in range(5):
        a(f"""
        s_add_u32 s56, s52, {4*i}
        s_sub_u32 s57, s56, 9
        s_cmp_lt_u32 s56, 9
        s_cselect_b32 s58, s56, s57
        s_cselect_b32 s59, 0, {UPOFF}
        s_lshl_b32 s60, s58, 10
        s_add_u32 s{S_DST+i}, s60, s59
        s_lshl_b32 s58, s58, 6
        v_add_u32 v16, s58, v1
        v_mul_hi_u32 v17, v16, s61
        v_mul_u32_u24 v18, 18, v17
        v_sub_u32 v18, v16, v18
        v_and_b32 v19, 0x13, v17
        v_bfe_u32 v20, v17, 2, 1
        v_lshl_or_b32 v19, v20, 3, v19
        v_bfe_u32 v20, v17, 3, 1
        v_lshl_or_b32 v19, v20, 2, v19
        v_mul_u32_u24 v19, 9216, v19
        v_lshl_add_u32 v19, v18, 4, v19
        v_add_u32 v{V_DMA+i}, s55, v19
        """)
    a(f"""
    s_cmp_lt_u32 s52, 2
    s_cbranch_scc1 K1_noff
    s_add_u32 s56, s53, 32
    s_cmp_lt_u32 s53, 4
    s_cselect_b32 s56, s56, s53
    s_cmp_eq_u32 s52, 2
    s_cselect_b32 s56, s53, s56
    s_mul_i32 s56, s56, 18432
    s_add_u32 s56, s56, {FF}
    v_lshlrev_b32 v16, 4, v1
    v_add_u32 v{V_DMA+4}, s56, v16
    s_sub_u32 s56, s52, 2
    s_lshl_b32 s56, s56, 10
    s_add_u32 s{S_DST+4}, s56, {FFOFF}
    """)
    a.label("K1_noff")
    a(f"""
    v_and_b32 v16, 15, v1
    s_lshl_b32 s55, s53, 4
    v_add_u32 v17, s55, v16
    v_lshlrev_b32 v17, 12, v17
    v_lshrrev_b32 v18, 5, v1
    v_lshl_add_u32 v17, v18, 10, v17
    v_bfe_u32 v18, v1, 4, 1
    v_lshlrev_b32 v18, 5, v18
    s_and_b32 s56, s54, 3
    s_lshl_b32 s56, s56, 3
    s_lshl_b32 s57, s52, 1
    s_add_u32 s56, s56, s57
    v_add_u32 v18, s56, v18
    v_lshl_add_u32 v17, v18, 4, v17
    s_lshr_b32 s56, s54, 2
    s_lshl_b32 s56, s56, 11
    s_add_u32 s56, s56, {YT}
    v_add_u32 v{V_Y}, s56, v17
    """)
    a(f"""
    v_lshrrev_b32 v16, 5, v1
    v_lshlrev_b32 v16, 4, v16
    v_bfe_u32 v17, v1, 4, 1
    v_lshl_add_u32 v16, v17, 2, v16
    v_bfe_u32 v17, v1, 2, 2
    v_add_u32 v16, v16, v17
    v_mul_u32_u24 v16, 288, v16
    v_and_b32 v18, 3, v1
    v_lshl_add_u32 v{V_TR}, v18, 3, v16
    v_add_u32 v{V_TR+1}, {3*STAGE}, v{V_TR}
    v_add_u32 v{V_TR+2}, {6*STAGE}, v{V_TR}
    v_lshlrev_b32 v{V_FFB}, 4, v1
    v_add_u32 v{V_FFB+1}, {3*STAGE}, v{V_FFB}
    v_add_u32 v{V_FFB+2}, {6*STAGE}, v{V_FFB}
    s_mov_b32 s{S_K}, 0xbfb8aa3b
    s_mov_b32 s{S_K+1}, 0xbfb8aa3b
    s_mov_b32 s{S_K+2}, 1.0
    s_mov_b32 s{S_K+3}, 1.0
    s_mov_b32 s{S_SRCW}, 0
    s_mov_b32 s{S_SRC4}, 0
    s_mov_b32 s{S_INC4}, 1024
    s_cmp_lt_u32 s52, 2
    s_cselect_b32 s{S_INC4}, 294912, s{S_INC4}
    s_cmp_lt_u32 s53, 4
    s_cselect_b64 vcc, -1, 0
    s_waitcnt lgkmcnt(0)
    """)
    srd(a, 16, 50, WS_END); srd(a, 8, 4, SZ_G); srd(a, 12, 6, SZ_G)
    a("s_cmp_eq_u32 s52, 0")
    for i in range(3): a(f"s_cselect_b32 s{20+i}, s{8+i}, s{12+i}")
    a("s_cmp_lt_u32 s52, 2")
    for i in range(3): a(f"s_cselect_b32 s{24+i}, s{12+i}, s{16+i}")
    a("s_mov_b32 s23, 0x20000\ns_mov_b32 s27, 0x20000")

def dma_ins(s, i):
    slot = s % NR; sr = S_SRD[i]; so = S_SRC4 if i == 4 else S_SRCW
    out = [f"s_add_u32 m0, s{S_DST+i}, {slot*STAGE}",
           ("VM", f"buffer_load_dwordx4 v{V_DMA+i}, s[{sr}:{sr+3}], s{so} offen lds", ("w", s))]
    if i == 3: out.append(f"s_add_u32 s{S_SRCW}, s{S_SRCW}, 294912") if False else None
    return out
def dma_group(s):
    out = []
    for i in (4, 0, 1, 2, 3):
        out += dma_ins(s, i)
        if i == 4: out.append(f"s_add_u32 s{S_SRC4}, s{S_SRC4}, s{S_INC4}")
    out.append(f"s_add_u32 s{S_SRCW}, s{S_SRCW}, 294912")
    return out
def x_group(T):
    out = []
    for i in range(4):
        out.append(("VM", f"buffer_load_dwordx4 {xfrag(T, i)}, v{V_X}, s[16:19], s{S_X+i} offen offset:{(T%4)*1024}", ("x", T)))
        if T % 4 == 3: out.append(f"s_add_u32 s{S_X+i}, s{S_X+i}, 4096")
    return out
def put(a, ins, pad=False):
    if isinstance(ins, tuple):
        if " lds" in ins[1] and a.lines[-1].startswith("s_add_u32 m0"): a("s_nop 0")
        a.vmem(ins[1], ins[2])
    else:
        a(ins)

def frag_read_ins(n, tau, T):
    fb = A_F + 4 * (n % NB)
    slot = T % NR
    third, rem = slot // 3, (slot % 3) * STAGE
    if tau < 18:
        j, mat = tau // 2, tau % 2
        return [f"ds_read_b64_tr_b16 a[{fb+2*rho}:{fb+2*rho+1}], v{V_TR+third} offset:{rem + mat*UPOFF + rho*2304 + 32*j}" for rho in range(2)]
    return [f"ds_read_b128 a[{fb}:{fb+3}], v{V_FFB+third} offset:{rem+FFOFF+(tau-18)*1024}"]

def mfma(a, n, tau, T, i):
    fb = A_F + 4 * (n % NB); fr = f"a[{fb}:{fb+3}]"
    c = "0" if T == 0 else accr(tau, i)
    if tau < 18: a(f"v_mfma_f32_16x16x32_bf16 {accr(tau, i)}, {fr}, {xfrag(T, i)}, {c}")
    else:        a(f"v_mfma_f32_16x16x32_bf16 {accr(tau, i)}, {xfrag(T, i)}, {fr}, {c}")

def epi_glu(j, ip, setid):
    T = V_T + 8 * setid; U = V_T + 8 * (1 - setid); out = []
    fg, _ = acc(2 * j, 0)
    for h in range(2):
        f, b = acc(2 * j, 2 * ip + h)
        if f == "a":
            for e in range(4): out.append(f"v_accvgpr_read_b32 v{T+4*h+e}, a{b+e}")
            b = T + 4 * h
        for e in (0, 2): out.append(f"v_pk_mul_f32 v[{T+4*h+e}:{T+4*h+e+1}], v[{b+e}:{b+e+1}], s[{S_K}:{S_K+1}]")
    for e in range(8): out.append(f"v_exp_f32 v{T+e}, v{T+e}")
    for e in range(0, 8, 2): out.append(f"v_pk_add_f32 v[{T+e}:{T+e+1}], v[{T+e}:{T+e+1}], s[{S_K+2}:{S_K+3}]")
    for e in range(8): out.append(f"v_rcp_f32 v{T+e}, v{T+e}")
    ub = []
    for h in range(2):
        f, b = acc(2 * j + 1, 2 * ip + h)
        if f == "a":
            for e in range(4): out.append(f"v_accvgpr_read_b32 v{U+4*h+e}, a{b+e}")
            b = U + 4 * h
        ub.append(b)
    for h in range(2):
        for e in (0, 2): out.append(f"v_pk_mul_f32 v[{T+4*h+e}:{T+4*h+e+1}], v[{T+4*h+e}:{T+4*h+e+1}], v[{ub[h]+e}:{ub[h]+e+1}]")
    for i in range(4): out.append(f"v_cvt_pk_bf16_f32 v{T+i}, v{T+2*i}, v{T+2*i+1}")
    for h in range(2):
        out.append(f"s_add_u32 s{S_TMP}, s49, {(2*ip+h)*147456}")
        out.append(f"STORE buffer_store_dwordx2 v[{T+2*h}:{T+2*h+1}], v{V_H}, s[16:19], s{S_TMP} offen")
    return out

def epi_j_offset(j):
    return [f"s_add_u32 s55, s{S_FG}, {j}", "s_lshr_b32 s49, s55, 1", "s_lshl_b32 s49, s49, 10",
            "s_and_b32 s55, s55, 1", "s_lshl_b32 s55, s55, 3", "s_add_u32 s49, s49, s55"]

def epi_dft(tile):
    out = []
    for rb in range(2):
        T = V_T + 8 * rb
        for h in range(2):
            f, b = acc(18 + tile, 2 * rb + h)
            for e in range(4): out.append(f"v_accvgpr_read_b32 v{T+4*h+e}, a{b+e}")
        for i in range(4): out.append(f"v_cvt_pk_bf16_f32 v{T+i}, v{T+2*i}, v{T+2*i+1}")
        out.append(f"s_mov_b32 s{S_TMP}, {tile*0x200000}")
        out.append(f"STORE buffer_store_dwordx4 v[{T}:{T+3}], v{V_Y}, s[16:19], s{S_TMP} offen offset:{rb*16}")
    return out

def emit(a, ins):
    if ins.startswith("STORE "): a.vmem(ins[6:], ("st",))
    else: a(ins)

def k1():
    a = Asm()
    stamp(a, 0)
    setup(a)
    stamp(a, 1)
    NPRO = 2
    for s in range(NPRO):
        for ins in x_group(s) + dma_group(s): put(a, ins, pad=True)
    nxt_w = NPRO; nxt_x = NPRO
    order = [(tau, T) for T in range(NST) for tau in range(20)]
    N = len(order)
    published = set()
    def publish(s):
        a.wait_vm([("w", s)])
        a("s_barrier"); published.add(s)
    def reads(n):
        if n >= N: return []
        tau, T = order[n]
        if T not in published: publish(T)
        return frag_read_ins(n, tau, T)
    publish(0)
    stamp(a, 2)
    for n in range(LA):
        for r in reads(n): a.lds(r, ("f", n))
    bg = []
    def filler():
        if bg: put(a, bg.pop(0))
    for n, (tau, T) in enumerate(order):
        if tau == 0:
            if T in (2, 5, 10): stamp(a, {2: 3, 5: 4, 10: 5}[T])
            a.wait_vm([("x", T)])
            assert not bg, bg
            for rep in range(2):
                if nxt_x < NST and nxt_x <= T + PX:
                    bg += x_group(nxt_x); nxt_x += 1
                if nxt_w < NST and nxt_w <= T + PW:
                    bg += dma_group(nxt_w); nxt_w += 1
            dense = len(bg) > 19
        a.wait_lg([("f", n)])
        if tau == 19:
            a(f"s_cbranch_vccz K1_skip{T}")
            for i in range(4): mfma(a, n, tau, T, i)
            a.label(f"K1_skip{T}")
            for r in reads(n + LA): a.lds(r, ("f", n + LA))
            while bg: filler()
            continue
        mfma(a, n, tau, T, 0)
        rd = reads(n + LA)
        if rd: a.lds(rd[0], ("f", n + LA))
        mfma(a, n, tau, T, 1)
        if len(rd) > 1: a.lds(rd[1], ("f", n + LA))
        else: filler()
        mfma(a, n, tau, T, 2)
        filler()
        mfma(a, n, tau, T, 3)
        if dense: filler()
    a("s_nop 15")
    stamp(a, 6)
    for ins in epi_dft(0): emit(a, ins)
    a("s_cbranch_vccz K1_nob")
    for ins in epi_dft(1): emit(a, ins)
    a.label("K1_nob")
    setid = 0
    for j in range(9):
        for ins in epi_j_offset(j): emit(a, ins)
        for ip in range(2):
            for ins in epi_glu(j, ip, setid): emit(a, ins)
            setid ^= 1
    stamps_out(a, 8, 1, 16, 16)
    a.label("K1_exit")
    a("s_endpgm")
    return a

def spec():
    return dict(name="k1_kernel", asm=k1(), grid=256, block=256, lds=NR * STAGE, vgpr=512, accum=256, sgpr=102)
```

```python
from asmlib import Asm
from layout import *
from common import *
import p3

STAGE = 20480
HOFF = 12288
NR = 7
PW = 6
NST = 36
LA = 3
NB = 5
V_TR, V_HB, V_DMA, V_P, V_T = 2, 20, 23, 28, 32
V_ACC, V_F, V_HF = 64, 160, 180
S_DST = 33; S_SW, S_SH = 28, 29; S_TMP = 43

def accr(j, i):
    b = V_ACC + 4 * (4 * j + i); return f"v[{b}:{b+3}]"
def hfrag(T, i):
    b = V_HF + 16 * (T % 2) + 4 * i; return f"v[{b}:{b+3}]"

def setup(a):
    a(f"""
    s_load_dwordx2 s[4:5], s[0:1], {K_WD}
    s_load_dwordx2 s[50:51], s[0:1], {K_WS}
    v_and_b32 v1, 63, v0
    v_lshrrev_b32 v32, 6, v0
    s_and_b32 s55, s2, 7
    s_lshr_b32 s56, s2, 3
    v_readfirstlane_b32 s52, v32
    s_lshr_b32 s53, s55, 1
    s_and_b32 s54, s55, 1
    s_lshl_b32 s54, s54, 3
    s_and_b32 s57, s56, 7
    s_add_u32 s54, s54, s57
    s_lshr_b32 s57, s56, 3
    """)
    a(f"""
    s_mul_i32 s58, s53, {1152*1152}
    s_mul_i32 s59, s57, 384
    s_add_u32 s58, s58, s59
    s_mov_b32 s61, 0xaaaaaab
    """)
    for i in range(3):
        a(f"""
        s_add_u32 s56, s52, {4*i}
        s_lshl_b32 s{S_DST+i}, s56, 10
        s_lshl_b32 s56, s56, 6
        v_add_u32 v32, s56, v1
        v_mul_hi_u32 v33, v32, s61
        v_mul_u32_u24 v34, 24, v33
        v_sub_u32 v34, v32, v34
        v_bfe_u32 v35, v33, 1, 2
        v_lshlrev_b32 v35, 1, v35
        v_xor_b32 v34, v34, v35
        v_mul_u32_u24 v33, 1152, v33
        v_lshl_add_u32 v33, v34, 4, v33
        v_add_u32 v{V_DMA+i}, s58, v33
        """)
    a(f"""
    s_lshl_b32 s58, s54, 3
    s_add_u32 s58, s58, s52
    s_mul_i32 s58, s58, 144
    s_mul_i32 s59, s53, 36
    s_add_u32 s58, s58, s59
    s_lshl_b32 s58, s58, 10
    s_add_u32 s58, s58, {H}
    v_lshlrev_b32 v32, 4, v1
    v_add_u32 v{V_DMA+3}, s58, v32
    v_add_u32 v{V_DMA+4}, {4*147456}, v{V_DMA+3}
    s_add_u32 s56, s52, 12
    s_lshl_b32 s{S_DST+3}, s56, 10
    s_add_u32 s{S_DST+4}, s{S_DST+3}, 4096
    s_mov_b32 s{S_SW}, 0
    s_mov_b32 s{S_SH}, 0
    """)
    a(f"""
    s_lshr_b32 s58, s52, 1
    s_and_b32 s59, s52, 1
    s_mul_i32 s60, s59, 6
    v_lshrrev_b32 v32, 4, v1
    v_bfe_u32 v33, v1, 2, 2
    v_lshl_add_u32 v34, v32, 2, v33
    v_mul_u32_u24 v34, 384, v34
    v_and_b32 v35, 3, v1
    v_lshl_add_u32 v34, v35, 3, v34
    v_and_b32 v32, 1, v32
    v_lshrrev_b32 v33, 1, v33
    v_lshl_or_b32 v33, v32, 1, v33
    """)
    for j in range(6):
        a(f"""
        s_add_u32 s56, s60, {j}
        v_xor_b32 v35, s56, v33
        v_lshl_add_u32 v{V_TR+3*j}, v35, 5, v34
        v_add_u32 v{V_TR+3*j+1}, {3*STAGE}, v{V_TR+3*j}
        v_add_u32 v{V_TR+3*j+2}, {6*STAGE}, v{V_TR+3*j}
        """)
    a(f"""
    s_lshl_b32 s56, s58, 12
    s_add_u32 s56, s56, {HOFF}
    v_lshlrev_b32 v32, 4, v1
    v_add_u32 v{V_HB}, s56, v32
    v_add_u32 v{V_HB+1}, {3*STAGE}, v{V_HB}
    v_add_u32 v{V_HB+2}, {6*STAGE}, v{V_HB}
    """)
    a(f"""
    s_lshl_b32 s56, s53, 7
    s_lshl_b32 s59, s54, 3
    s_add_u32 s56, s56, s59
    s_lshl_b32 s59, s58, 2
    s_add_u32 s56, s56, s59
    s_mul_i32 s56, s56, 36
    s_mul_i32 s59, s57, 12
    s_add_u32 s56, s56, s59
    s_add_u32 s56, s56, s60
    s_lshl_b32 s56, s56, 9
    s_add_u32 s56, s56, {PART}
    v_lshlrev_b32 v32, 3, v1
    v_add_u32 v{V_P}, s56, v32
    s_waitcnt lgkmcnt(0)
    """)
    srd(a, 8, 4, SZ_G); srd(a, 16, 50, WS_END)

def dma_group(s):
    slot = s % NR; out = []
    for i in range(5):
        sr, so = (8, S_SW) if i < 3 else (16, S_SH)
        out.append(f"s_add_u32 m0, s{S_DST+i}, {slot*STAGE}")
        out.append(("VM", f"buffer_load_dwordx4 v{V_DMA+i}, s[{sr}:{sr+3}], s{so} offen lds", ("w", s)))
        if i == 2: out.append(f"s_add_u32 s{S_SW}, s{S_SW}, 36864")
    out.append(f"s_add_u32 s{S_SH}, s{S_SH}, 1024")
    return out
def put(a, ins, pad=False):
    if isinstance(ins, tuple):
        if " lds" in ins[1] and a.lines[-1].startswith("s_add_u32 m0"): a("s_nop 0")
        a.vmem(ins[1], ins[2])
    else:
        a(ins)

def w_reads(n, j, T):
    fb = V_F + 4 * (n % NB); slot = T % NR; third, rem = slot // 3, (slot % 3) * STAGE
    return [f"ds_read_b64_tr_b16 v[{fb+2*rho}:{fb+2*rho+1}], v{V_TR+3*j+third} offset:{rem + rho*16*384}" for rho in range(2)]
def h_read(T, i):
    slot = T % NR; third, rem = slot // 3, (slot % 3) * STAGE
    return f"ds_read_b128 {hfrag(T, i)}, v{V_HB+third} offset:{rem + i*1024}"

def gemm2(a):
    stamp(a, 0)
    setup(a)
    stamp(a, 1)
    NPRO = 3
    for s in range(NPRO):
        for ins in dma_group(s): put(a, ins, pad=True)
    nxt = NPRO
    order = [(j, T) for T in range(NST) for j in range(6)]
    N = len(order)
    def publish(s):
        a.wait_vm([("w", s)]); a("s_barrier")
    publish(0)
    stamp(a, 2)
    for i in range(4): a.lds(h_read(0, i), ("h", 0))
    for n in range(LA):
        for r in w_reads(n, *order[n]): a.lds(r, ("f", n))
    bg = []
    def filler():
        if bg: put(a, bg.pop(0))
    for n, (j, T) in enumerate(order):
        if j == 0:
            if T in (4, 12, 24): stamp(a, {4: 3, 12: 4, 24: 5}[T])
            if T + 1 < NST: publish(T + 1)
            assert not bg
            for rep in range(2):
                if nxt < NST and nxt <= T + PW and (rep == 0 or T < 6):
                    bg += dma_group(nxt); nxt += 1
            a.wait_lg([("h", T)])
        a.wait_lg([("f", n)])
        fb = V_F + 4 * (n % NB)
        rd = w_reads(n + LA, *order[n + LA]) if n + LA < N else []
        hr = [h_read(T + 1, j - 1)] if (1 <= j <= 4 and T + 1 < NST) else []
        for i in range(4):
            c = "0" if T == 0 else accr(j, i)
            a(f"v_mfma_f32_16x16x32_bf16 {accr(j, i)}, v[{fb}:{fb+3}], {hfrag(T, i)}, {c}")
            if i < 2 and rd: a.lds(rd[i], ("f", n + LA))
            elif i == 2 and hr: a.lds(hr[0], ("h", T + 1)); filler() if len(bg) > 12 else None
            else: filler()
            if i == 3: filler()
        if j == 5:
            while bg:
                ins = bg.pop(0); put(a, ins, pad=True)
    a("s_nop 7")
    stamp(a, 6)
    for j in range(6):
        for ip in range(2):
            T_ = V_T + 4 * ((2 * j + ip) % 4)
            for h in range(2):
                b = V_ACC + 4 * (4 * j + 2 * ip + h)
                a(f"v_cvt_pk_bf16_f32 v{T_+2*h}, v{b}, v{b+1}\nv_cvt_pk_bf16_f32 v{T_+2*h+1}, v{b+2}, v{b+3}")
            for h in range(2):
                a(f"s_mov_b32 s{S_TMP}, {(2*ip+h)*36*512 + j*512}")
                a.vmem(f"buffer_store_dwordx2 v[{T_+2*h}:{T_+2*h+1}], v{V_P}, s[16:19], s{S_TMP} offen", ("st",))
    stamps_out(a, 8, 2, 16, 32)
    a("s_endpgm")

def k2():
    a = Asm()
    a(f"""
    s_cmp_ge_u32 s2, {192+37}
    s_cbranch_scc1 K2_exit
    s_cmp_ge_u32 s2, 192
    s_cbranch_scc1 K2_p3
    """)
    gemm2(a)
    a.label("K2_p3")
    a.vm = []; a.lg = []
    p3.p3(a)
    a.label("K2_exit")
    a("s_endpgm")
    return a

def spec():
    return dict(name="k2_kernel", asm=k2(), grid=192 + 37, block=256, lds=NR * STAGE, vgpr=512, accum=256, sgpr=102)
```

```python
from asmlib import Asm
from layout import *
from common import *

V_L16, V_YP, V_PT, V_XO, V_YNA, V_RW, V_RR = 2, 3, 4, 5, 6, 7, 8
V_YN = 10
V_Y = 16
V_ACC = 64
V_PART = 136
V_X = 184
V_R = 196
V_T = 208
def fi(T, jj):
    b = 4 * (9 * T + jj); return f"a[{b}:{b+3}]"
def yfrag(T, i):
    b = V_Y + 4 * (2 * T + i); return f"v[{b}:{b+3}]"
def accb(jj, i): return V_ACC + 4 * (2 * jj + i)

def k3():
    a = Asm()
    a("s_cmp_ge_u32 s2, 256\ns_cbranch_scc1 K3_exit")
    stamp(a, 0)
    a(f"""
    s_load_dwordx2 s[4:5], s[0:1], {K_X}
    s_load_dwordx2 s[6:7], s[0:1], {K_OUT}
    s_load_dwordx2 s[50:51], s[0:1], {K_WS}
    v_and_b32 v1, 63, v0
    v_lshrrev_b32 v9, 6, v0
    s_and_b32 s55, s2, 7
    s_lshr_b32 s56, s2, 3
    v_readfirstlane_b32 s52, v9
    s_and_b32 s53, s55, 3
    s_lshr_b32 s54, s55, 2
    s_lshl_b32 s56, s56, 1
    s_add_u32 s54, s54, s56
    """)
    a(f"""
    v_lshlrev_b32 v{V_L16}, 4, v1
    s_mul_i32 s40, s53, {9*18*1024}
    s_mul_i32 s41, s52, {6*1024}
    s_add_u32 s40, s40, s41
    s_add_u32 s40, s40, {FI}
    v_and_b32 v9, 15, v1
    v_lshrrev_b32 v11, 4, v1
    v_lshlrev_b32 v12, 15, v11
    v_lshl_add_u32 v12, v9, 4, v12
    s_lshl_b32 s41, s54, 9
    s_mul_i32 s42, s52, {6*4*32768}
    s_add_u32 s41, s41, s42
    s_add_u32 s41, s41, {YP}
    v_add_u32 v{V_YP}, s41, v12
    """)
    a(f"""
    s_mul_i32 s41, s54, {2*36*512}
    s_mul_i32 s42, s53, {9*512}
    s_add_u32 s41, s41, s42
    s_mul_i32 s42, s52, {3*512}
    s_add_u32 s41, s41, s42
    s_add_u32 s41, s41, {PART}
    v_lshlrev_b32 v12, 3, v1
    v_add_u32 v{V_PT}, s41, v12
    """)
    a(f"""
    s_lshr_b32 s41, s54, 3
    s_and_b32 s42, s54, 7
    s_and_b32 s43, s41, 3
    s_lshl_b32 s43, s43, 3
    s_add_u32 s43, s43, s42
    s_lshr_b32 s41, s41, 2
    s_lshl_b32 s41, s41, 10
    s_add_u32 s43, s43, s41
    v_lshlrev_b32 v12, 5, v9
    v_add_u32 v12, s43, v12
    v_mul_u32_u24 v12, 1152, v12
    v_lshl_add_u32 v12, v11, 3, v12
    s_mul_i32 s41, s53, 288
    s_mul_i32 s42, s52, 96
    s_add_u32 s41, s41, s42
    v_add_u32 v{V_XO}, s41, v12
    s_lshl_b32 s41, s54, 7
    s_add_u32 s41, s41, {YN}
    v_lshlrev_b32 v12, 2, v9
    v_add_u32 v{V_YNA}, s41, v12
    s_mul_i32 s41, s52, {18*1024}
    v_add_u32 v{V_RW}, s41, v{V_L16}
    s_mul_i32 s41, s52, {6*1024}
    v_add_u32 v{V_RR}, s41, v{V_L16}
    s_mov_b32 s27, 0xffff0000
    s_mov_b32 s44, 0x35638e39
    s_mov_b32 s45, 0xbfb8aa3b
    s_waitcnt lgkmcnt(0)
    """)
    srd(a, 16, 50, WS_END); srd(a, 8, 4, SZ_X); srd(a, 12, 6, SZ_X)
    def loads(T):
        for i in range(2):
            a(f"s_mov_b32 s46, {T*4*32768 + i*256}")
            a.vmem(f"buffer_load_dwordx4 {yfrag(T, i)}, v{V_YP}, s[16:19], s46 offen", ("k", T))
        for jj in range(9):
            a(f"s_add_u32 s46, s40, {jj*18*1024 + T*1024}")
            a.vmem(f"buffer_load_dwordx4 {fi(T, jj)}, v{V_L16}, s[16:19], s46 offen", ("k", T))
    def side_loads(part):
        for ks in range(4 if part == 0 else 0):
            for t in range(6):
                jj, i = t // 2, t % 2
                a(f"s_mov_b32 s46, {ks*128*36*512 + i*36*512 + jj*512}")
                b = V_PART + 2 * (6 * ks + t)
                a.vmem(f"buffer_load_dwordx2 v[{b}:{b+1}], v{V_PT}, s[16:19], s46 offen", "p")
        if part == 0: return
        for t in range(6):
            jj, i = t // 2, t % 2
            a(f"s_mov_b32 s46, {i*16*32*1152 + jj*32}")
            a.vmem(f"buffer_load_dwordx2 v[{V_X+2*t}:{V_X+2*t+1}], v{V_XO}, s[8:11], s46 offen", "p")
        for i in range(2):
            a.vmem(f"buffer_load_dword v{V_YN+i}, v{V_YNA}, s[16:19], 0 offen offset:{64*i}", "p")
    for T in range(5): loads(T)
    stamp(a, 1)
    for T in range(6):
        a.wait_vm([("k", T)])
        for jj in range(9):
            for i in range(2):
                b = accb(jj, i); c = "0" if T == 0 else f"v[{b}:{b+3}]"
                a(f"v_mfma_f32_16x16x32_bf16 v[{b}:{b+3}], {fi(T, jj)}, {yfrag(T, i)}, {c}")
        if T == 0: loads(5)
        if T == 2: side_loads(0)
        if T == 3: side_loads(1)
    a("s_nop 7")
    stamp(a, 2)
    a("s_cmp_eq_u32 s52, 0\ns_cbranch_scc1 K3_w0\ns_cmp_eq_u32 s52, 1\ns_cbranch_scc1 K3_w1")
    for w in (2, 0, 1):
        if w != 2: a.label(f"K3_w{w}")
        for jj in range(9):
            if jj // 3 == w: continue
            for i in range(2):
                b = accb(jj, i)
                a(f"ds_write_b128 v{V_RW}, v[{b}:{b+3}] offset:{(2*jj+i)*1024}")
        if w != 0:
            a("s_waitcnt lgkmcnt(0)")
            for t in range(6):
                for r in range(4): a(f"v_mov_b32 v{V_ACC+4*t+r}, v{V_ACC+4*(6*w+t)+r}")
        if w != 1: a("s_branch K3_red")
    a.label("K3_red")
    a("s_waitcnt lgkmcnt(0)\ns_barrier")
    a(f"""
    s_add_u32 s41, s52, 1
    s_cmp_eq_u32 s41, 3
    s_cselect_b32 s41, 0, s41
    s_add_u32 s42, s41, 1
    s_cmp_eq_u32 s42, 3
    s_cselect_b32 s42, 0, s42
    s_mul_i32 s41, s41, {18*1024}
    s_mul_i32 s42, s42, {18*1024}
    v_add_u32 v12, s41, v{V_RR}
    v_add_u32 v13, s42, v{V_RR}
    """)
    R0 = 16
    for t in range(6):
        a(f"ds_read_b128 v[{R0+8*t}:{R0+8*t+3}], v12 offset:{t*1024}")
        a(f"ds_read_b128 v[{R0+8*t+4}:{R0+8*t+7}], v13 offset:{t*1024}")
    a("s_waitcnt vmcnt(0) lgkmcnt(0)"); a.vm = []
    T_ = V_T
    for t in range(6):
        i = t % 2; A = V_ACC + 4 * t
        for r in range(4):
            a(f"v_add_f32 v{A+r}, v{A+r}, v{R0+8*t+r}")
        for r in range(4):
            a(f"v_add_f32 v{A+r}, v{A+r}, v{R0+8*t+4+r}")
        for r in range(4):
            a(f"v_{'add' if r % 2 == 0 else 'sub'}_f32 v{A+r}, v{A+r}, v{V_YN+i}")
        for r in range(4): a(f"v_mul_f32 v{A+r}, s44, v{A+r}")
        a(f"v_cvt_pk_bf16_f32 v{T_}, v{A}, v{A+1}\nv_cvt_pk_bf16_f32 v{T_+1}, v{A+2}, v{A+3}")
        for h in range(2):
            a(f"v_lshlrev_b32 v{A+2*h}, 16, v{T_+h}\nv_and_b32 v{A+2*h+1}, s27, v{T_+h}")
        for h in range(2):
            for ks in range(4):
                p = V_PART + 2 * (6 * ks + t) + h
                if ks == 0: a(f"v_lshlrev_b32 v{T_+2+2*h}, 16, v{p}\nv_and_b32 v{T_+3+2*h}, s27, v{p}")
                else:
                    a(f"v_lshlrev_b32 v{T_+6}, 16, v{p}\nv_and_b32 v{T_+7}, s27, v{p}")
                    a(f"v_add_f32 v{T_+2+2*h}, v{T_+2+2*h}, v{T_+6}\nv_add_f32 v{T_+3+2*h}, v{T_+3+2*h}, v{T_+7}")
        V = T_ + 2
        a(f"v_cvt_pk_bf16_f32 v{T_}, v{V}, v{V+1}\nv_cvt_pk_bf16_f32 v{T_+1}, v{V+2}, v{V+3}")
        for h in range(2):
            a(f"v_lshlrev_b32 v{V+2*h}, 16, v{T_+h}\nv_and_b32 v{V+2*h+1}, s27, v{T_+h}")
        E = T_ + 8
        for r in range(4): a(f"v_mul_f32 v{E+r}, s45, v{V+r}")
        for r in range(4): a(f"v_exp_f32 v{E+r}, v{E+r}")
        for r in range(4): a(f"v_add_f32 v{E+r}, 1.0, v{E+r}")
        for r in range(4): a(f"v_rcp_f32 v{E+r}, v{E+r}")
        for r in range(4): a(f"v_mul_f32 v{E+r}, v{E+r}, v{V+r}")
        a(f"v_cvt_pk_bf16_f32 v{T_}, v{E}, v{E+1}\nv_cvt_pk_bf16_f32 v{T_+1}, v{E+2}, v{E+3}")
        for h in range(2):
            a(f"v_lshlrev_b32 v{E+2*h}, 16, v{T_+h}\nv_and_b32 v{E+2*h+1}, s27, v{T_+h}")
        for r in range(4): a(f"v_mul_f32 v{E+r}, v{E+r}, v{A+r}")
        a(f"v_cvt_pk_bf16_f32 v{T_}, v{E}, v{E+1}\nv_cvt_pk_bf16_f32 v{T_+1}, v{E+2}, v{E+3}")
        for h in range(2):
            x = V_X + 2 * t + h
            a(f"v_lshlrev_b32 v{E+2*h}, 16, v{T_+h}\nv_and_b32 v{E+2*h+1}, s27, v{T_+h}")
            a(f"v_lshlrev_b32 v{V+2*h}, 16, v{x}\nv_and_b32 v{V+2*h+1}, s27, v{x}")
        for r in range(4): a(f"v_add_f32 v{E+r}, v{E+r}, v{V+r}")
        o = V_X + 2 * t
        a(f"v_cvt_pk_bf16_f32 v{o}, v{E}, v{E+1}\nv_cvt_pk_bf16_f32 v{o+1}, v{E+2}, v{E+3}")
        a(f"s_mov_b32 s46, {i*16*32*1152 + (t//2)*32}")
        a(f"buffer_store_dwordx2 v[{o}:{o+1}], v{V_XO}, s[12:15], s46 offen")
    stamps_out(a, 4, 4, 16, 12)
    a.label("K3_exit")
    a("s_endpgm")
    return a

def spec():
    return dict(name="k3_kernel", asm=k3(), grid=256, block=192, lds=54 * 1024, vgpr=512, accum=256, sgpr=102)
```

```python
XN   = 0x0
WT   = 0x240000
FF   = 0x490000
FI   = 0x540000
TAB  = 0x5E8000
YT   = 0x600000
YP   = 0x840000
YN   = 0xA80000
PART = 0xB00000
H    = 0x1400000
WS_END = 0x2600000
OOB = 0x7F000000
K_X, K_WR, K_WI, K_WG, K_WU, K_WD, K_OUT, K_DBG, K_WS = 0, 8, 16, 32, 40, 48, 56, 64, 72
SZ_X = 2048*576*2
SZ_W = 2048*289*2
SZ_G = 576*4608*2

def srd(a, s, base_lo, size):
    a(f"s_mov_b32 s{s}, s{base_lo}\ns_and_b32 s{s+1}, s{base_lo+1}, 0xffff\ns_mov_b32 s{s+2}, {size}\ns_mov_b32 s{s+3}, 0x20000")

def kernel_header(name):
    return f".globl {name}\n.p2align 8\n.type {name},@function\n{name}:\n"
def kernel_desc(name, vgpr, accum, sgpr=102):
    return f""".p2align 6
.amdhsa_kernel {name}
  .amdhsa_next_free_vgpr {vgpr}
  .amdhsa_next_free_sgpr {sgpr}
  .amdhsa_accum_offset {accum}
  .amdhsa_group_segment_fixed_size 0
  .amdhsa_kernarg_size 80
  .amdhsa_user_sgpr_count 2
  .amdhsa_user_sgpr_kernarg_segment_ptr 1
  .amdhsa_system_sgpr_workgroup_id_x 1
  .amdhsa_float_denorm_mode_32 3
.end_amdhsa_kernel
"""
```

```python
from layout import *
from common import *

L_F64A, L_F64, L_F32, L_TW1, L_TW2 = 0, 24*1024, 48*1024, 54*1024, 70*1024
L_X = 86 * 1024
V_L16, V_L16B, V_YOFF, V_WOFF, V_XW, V_XR, V_OUT, V_YN = 2, 3, 4, 5, 6, 7, 8, 9
V_YR, V_YI = 16, 32
V_W = 48
V_DR, V_DI = 80, 96
V_TC, V_TS = 112, 128
V_PR, V_PI = 144, 152
V_E = 160
V_B = 192
V_T = 220

def mf(a, d, x, y, first):
    a(f"v_mfma_f32_32x32x16_bf16 v[{d}:{d+15}], v[{x}:{x+3}], v[{y}:{y+3}], {'0' if first else f'v[{d}:{d+15}]'}")
def tab(a, dst, off, tag):
    base, o = (V_L16, off) if off < 65536 else (V_L16B, off - 65536)
    a.lds(f"ds_read_b128 v[{dst}:{dst+3}], v{base} offset:{o}", tag)
def cmul(a, sign):
    for r in range(16):
        t = V_T + (r % 4) * 2
        a(f"v_mul_f32 v{t}, v{V_DI+r}, v{V_TS+r}\nv_mul_f32 v{t+1}, v{V_DR+r}, v{V_TS+r}")
        if sign > 0:
            a(f"v_fma_f32 v{V_DR+r}, v{V_DR+r}, v{V_TC+r}, -v{t}\nv_fma_f32 v{V_DI+r}, v{V_DI+r}, v{V_TC+r}, v{t+1}")
        else:
            a(f"v_fma_f32 v{V_DR+r}, v{V_DR+r}, v{V_TC+r}, v{t}\nv_fma_f32 v{V_DI+r}, v{V_DI+r}, v{V_TC+r}, -v{t+1}")
def pack(a, pr, pi):
    for i in range(8):
        a(f"v_cvt_pk_bf16_f32 v{pr+i}, v{V_DR+2*i}, v{V_DR+2*i+1}\nv_cvt_pk_bf16_f32 v{pi+i}, v{V_DI+2*i}, v{V_DI+2*i+1}")
def load_tw(a, base, jt):
    for cs, dst in ((0, V_TC), (1, V_TS)):
        for q in range(4): tab(a, dst + 4 * q, base + ((jt * 2 + cs) * 4 + q) * 1024, "tw")

def column(a):
    for jt in range(2):
        load_tw(a, L_TW1, jt)
        for t in range(4):
            for kind in range(3): tab(a, V_B + 4 * kind + 12 * (t % 2), L_F64A + ((kind * 2 + jt) * 4 + t) * 1024, ("b", t))
            a.wait_lg([("b", t)])
            b = V_B + 12 * (t % 2)
            mf(a, V_DR, V_YR + 4 * t, b, t == 0)
            mf(a, V_DI, V_YI + 4 * t, b, t == 0)
            mf(a, V_DR, V_YI + 4 * t, b + 4, False)
            mf(a, V_DI, V_YR + 4 * t, b + 8, False)
        for u in range(2):
            for kind in range(3): tab(a, V_B + 4 * kind + 12 * u, L_F32 + (kind * 2 + u) * 1024, "f32")
        a.wait_lg(["tw"]); a("s_nop 15")
        cmul(a, -1)
        pack(a, V_PR, V_PI)
        load_tw(a, L_TW2, jt)
        a.wait_lg(["f32"]); a("s_nop 1")
        for u in range(2):
            b = V_B + 12 * u
            mf(a, V_DR, b, V_PR + 4 * u, u == 0)
            mf(a, V_DI, b, V_PI + 4 * u, u == 0)
            mf(a, V_DR, b + 4, V_PI + 4 * u, False)
            mf(a, V_DI, b + 8, V_PR + 4 * u, False)
        a("s_nop 15")
        for r8 in range(2):
            for i in range(4):
                wr = V_W + ((jt * 2 + 0) * 2 + r8) * 4 + i; wi = V_W + ((jt * 2 + 1) * 2 + r8) * 4 + i
                for h in range(2):
                    r = 8 * r8 + 2 * i + h; t = V_T + 8
                    if h == 0: a(f"v_lshlrev_b32 v{t}, 16, v{wr}\nv_lshlrev_b32 v{t+1}, 16, v{wi}")
                    else:      a(f"v_and_b32 v{t}, s27, v{wr}\nv_and_b32 v{t+1}, s27, v{wi}")
                    a(f"v_mul_f32 v{t+2}, v{V_DI+r}, v{t+1}\nv_mul_f32 v{t+3}, v{V_DR+r}, v{t+1}")
                    a(f"v_fma_f32 v{V_DR+r}, v{V_DR+r}, v{t}, -v{t+2}\nv_fma_f32 v{V_DI+r}, v{V_DI+r}, v{t}, v{t+3}")
        pack(a, V_PR, V_PI)
        a("s_nop 1")
        for u in range(2):
            b = V_B + 12 * u
            mf(a, V_DR, V_PR + 4 * u, b, u == 0)
            mf(a, V_DI, V_PI + 4 * u, b, u == 0)
            mf(a, V_DR, V_PI + 4 * u, b + 8, False)
            mf(a, V_DI, V_PR + 4 * u, b + 4, False)
        a.wait_lg(["tw"]); a("s_nop 15")
        cmul(a, +1)
        pack(a, V_E + 16 * jt, V_E + 16 * jt + 8)
    for b_ in range(2):
        for t in range(4):
            for kind in range(3): tab(a, V_B + 4 * kind + 12 * (t % 2), L_F64 + ((kind * 2 + b_) * 4 + t) * 1024, ("b", t))
            a.wait_lg([("b", t)])
            b = V_B + 12 * (t % 2)
            ar = V_E + 16 * (t // 2) + 4 * (t % 2); ai = ar + 8
            if t == 0 and b_ == 0: a("s_nop 1")
            mf(a, V_DR, ar, b, t == 0)
            mf(a, V_DI, ai, b, t == 0)
            mf(a, V_DR, ai, b + 8, False)
            mf(a, V_DI, ar, b + 4, False)
        a("s_nop 15")
        a("s_cmp_eq_u32 s44, 288")
        a(f"s_cbranch_scc1 P3_nyq{b_}")
        for r in range(16):
            t = V_T + r % 4
            a(f"v_cvt_pk_bf16_f32 v{t}, v{V_DR+r}, v{V_DI+r}")
            a.lds(f"ds_write_b32 v{V_XW}, v{t} offset:{b_*16384 + (8*(r//4)+r%4)*512}", "xw")
        a(f"s_branch P3_nyqend{b_}")
        a.label(f"P3_nyq{b_}")
        for r in range(16):
            a(f"s_mov_b32 s45, {(b_*1024 + 32*(8*(r//4)+r%4))*4}")
            a(f"buffer_store_dword v{V_DR+r}, v{V_YN}, s[16:19], s45 offen")
        a.label(f"P3_nyqend{b_}")

def p3(a):
    stamp(a, 0)
    a(f"""
    s_load_dwordx2 s[50:51], s[0:1], {K_WS}
    v_and_b32 v1, 63, v0
    v_lshrrev_b32 v10, 6, v0
    s_sub_u32 s40, s2, 192
    v_lshlrev_b32 v{V_L16}, 4, v1
    v_readfirstlane_b32 s52, v10
    v_add_u32 v{V_L16B}, 0x10000, v{V_L16}
    s_mov_b32 s27, 0xffff0000
    v_lshlrev_b32 v11, 4, v0
    v_add_u32 v12, {TAB}, v11
    v_add_u32 v{V_XR}, {L_X}, v11
    v_and_b32 v13, 31, v1
    v_lshrrev_b32 v14, 5, v1
    v_lshlrev_b32 v15, 4, v13
    v_lshl_add_u32 v15, v14, 11, v15
    s_lshl_b32 s41, s52, 2
    s_add_u32 s41, s41, {L_X}
    v_add_u32 v{V_XW}, s41, v15
    v_lshlrev_b32 v15, 2, v13
    v_lshl_add_u32 v15, v14, 9, v15
    v_add_u32 v{V_YN}, {YN}, v15
    s_waitcnt lgkmcnt(0)
    """)
    srd(a, 16, 50, WS_END)
    a("s_lshl_b32 s42, s52, 10")
    for g in range(22):
        n = min(4, 86 - 4 * g)
        if n < 4: a(f"s_cmp_ge_u32 s52, {n}\ns_cbranch_scc1 P3_tabdone")
        a(f"s_add_u32 m0, s42, {g*4096}\ns_mov_b32 s43, {g*4096}")
        a("buffer_load_dwordx4 v12, s[16:19], s43 offen lds")
    a.label("P3_tabdone")
    a("s_mov_b32 s46, 0")
    a.label("P3_pass")
    a(f"""
    s_lshl_b32 s44, s40, 3
    s_lshl_b32 s45, s46, 2
    s_add_u32 s44, s44, s45
    s_add_u32 s44, s44, s52
    s_cmp_gt_u32 s44, 288
    s_cbranch_scc1 P3_skipcol
    s_lshl_b32 s47, s44, 13
    s_add_u32 s47, s47, {WT}
    s_lshl_b32 s48, s44, 13
    s_cmp_eq_u32 s44, 288
    s_cselect_b32 s48, 4096, s48
    s_add_u32 s48, s48, {YT}
    s_add_u32 s49, s48, 4096
    """)
    for f in range(8):
        a(f"s_add_u32 s45, s47, {(f//4)*4096}")
        a(f"buffer_load_dwordx4 v[{V_W+4*f}:{V_W+4*f+3}], v{V_L16}, s[16:19], s45 offen offset:{(f%4)*1024}")
    for t in range(4):
        a(f"buffer_load_dwordx4 v[{V_YR+4*t}:{V_YR+4*t+3}], v{V_L16}, s[16:19], s48 offen offset:{t*1024}")
    a("""
    s_cmp_eq_u32 s44, 0
    s_cbranch_scc1 P3_zero
    s_cmp_eq_u32 s44, 288
    s_cbranch_scc1 P3_zero
    """)
    for t in range(4):
        a(f"buffer_load_dwordx4 v[{V_YI+4*t}:{V_YI+4*t+3}], v{V_L16}, s[16:19], s49 offen offset:{t*1024}")
    a("s_branch P3_go")
    a.label("P3_zero")
    for r in range(16): a(f"v_mov_b32 v{V_YI+r}, 0")
    a.label("P3_go")
    a.label("P3_skipcol")
    a("s_waitcnt vmcnt(0)\ns_barrier")
    a("s_cmp_gt_u32 s44, 288\ns_cbranch_scc1 P3_nocol")
    stamp(a, 1)
    column(a)
    a.label("P3_nocol")
    a("s_waitcnt lgkmcnt(0)\ns_barrier"); a.lg = []
    a(f"""
    s_lshl_b32 s45, s40, 1
    s_add_u32 s45, s45, s46
    s_cmp_ge_u32 s45, 72
    s_cbranch_scc1 P3_noflush
    s_lshl_b32 s45, s45, 15
    s_add_u32 s45, s45, {YP}
    v_lshlrev_b32 v{V_OUT}, 4, v0
    """)
    for i in range(8):
        a(f"ds_read_b128 v[{V_DR+4*i}:{V_DR+4*i+3}], v{V_XR} offset:{i*4096}")
    a("s_waitcnt lgkmcnt(0)")
    for i in range(8):
        a(f"s_add_u32 s43, s45, {i*4096}")
        a(f"buffer_store_dwordx4 v[{V_DR+4*i}:{V_DR+4*i+3}], v{V_OUT}, s[16:19], s43 offen")
    a.label("P3_noflush")
    a("""
    s_add_u32 s46, s46, 1
    s_cmp_lt_u32 s46, 2
    s_cbranch_scc0 P3_done
    s_barrier
    s_branch P3_pass
    """)
    a.label("P3_done")
    stamps_out(a, 3, 3, 16, 10)
    a("s_endpgm")
```

```python
import sys, importlib
import asmlib
from layout import *

HEADER = open("recurrent_scan__spectral_gfnet__glu_gated_glu__prompt.s.ref").read().split("; Override launch geometry")[0]

def assemble(kernels, out):
    txt = HEADER
    for k in kernels:
        txt += f"; @launch kernel={k['name']} grid=({k['grid']},1,1) block=({k['block']},1,1) lds={k['lds']}\n"
    txt += '.amdgcn_target "amdgcn-amd-amdhsa--gfx950"\n.text\n'
    seen = set(); nprob = 0
    for k in kernels:
        if k["name"] in seen: continue
        seen.add(k["name"])
        for p in asmlib.check_hazards(k["asm"].lines, k["name"]):
            print("HAZARD", p); nprob += 1
        txt += kernel_header(k["name"]) + k["asm"].text() + f"{k['name']}_end:\n"
    txt += '.section .rodata,"a"\n'
    seen = set()
    for k in kernels:
        if k["name"] in seen: continue
        seen.add(k["name"])
        txt += kernel_desc(k["name"], k["vgpr"], k["accum"], k.get("sgpr", 102))
    open(out, "w").write(txt)
    print("wrote", out, len(txt), "bytes; hazards:", nprob)

def all_kernels(which):
    ks = []
    if "0" in which:
        import k0; ks.append(dict(name="k0_kernel", asm=k0.k0(), grid=512, block=256, lds=0, vgpr=96, accum=96, sgpr=102))
    if "1" in which:
        import k1; ks.append(k1.spec())
    if "2" in which:
        import k2; ks.append(k2.spec())
    if "3" in which:
        import k3; ks.append(k3.spec())
    return ks

if __name__ == "__main__":
    which = sys.argv[1]; out = sys.argv[2]
    assemble(all_kernels(which), out)
```

```python
import os
from layout import *
STAMP = os.environ.get("STAMP") == "1"
def stamp(a, i, base=64):
    if STAMP:
        a(f"s_memtime s[{base+4*i}:{base+1+4*i}]\ns_memrealtime s[{base+2+4*i}:{base+3+4*i}]\ns_waitcnt lgkmcnt(0)")
        a.lg = []
def stamps_out(a, n, kidx, ws_srd, vt, base=64, nwaves=4, s_wave=None):
    if not STAMP: return
    a("s_waitcnt vmcnt(0)")
    stamp(a, n - 1, base)
    a((f"v_mov_b32 v{vt}, s{s_wave}" if s_wave is not None else f"v_lshrrev_b32 v{vt}, 6, v0") + f"\nv_lshl_add_u32 v{vt}, s2, 2, v{vt}\nv_lshlrev_b32 v{vt}, 6, v{vt}\nv_add_u32 v{vt}, {WS_END + kidx*0x40000}, v{vt}")
    a(f"s_mov_b32 s{ws_srd+2}, 0x10000000")
    for i in range(n):
        a(f"v_mov_b32 v{vt+1}, s{base+4*i}\nbuffer_store_dword v{vt+1}, v{vt}, s[{ws_srd}:{ws_srd+3}], 0 offen offset:{4*i}")
        a(f"v_mov_b32 v{vt+1}, s{base+2+4*i}\nbuffer_store_dword v{vt+1}, v{vt}, s[{ws_srd}:{ws_srd+3}], 0 offen offset:{32+4*i}")

def touch_code_ins(label, end_label, nwaves_xcd, s_wv, vt, st, dst, uniq=''):
    uid = f"TC_{label}_{dst}{uniq}"
    return [f"s_getpc_b64 s[{st}:{st+1}]\n{uid}:",
            f"s_add_u32 s{st}, s{st}, {label}-{uid}", f"s_addc_u32 s{st+1}, s{st+1}, 0",
            f"s_mov_b32 s{st+2}, ({end_label}-{label}+127)/128", f"s_add_u32 s{st+2}, s{st+2}, {nwaves_xcd-1}",
            f"s_mov_b32 s{st+3}, {-(-(1 << 32) // nwaves_xcd)}", f"s_mul_hi_u32 s{st+2}, s{st+2}, s{st+3}",
            f"v_mbcnt_lo_u32_b32 v{vt}, -1, 0", f"v_mbcnt_hi_u32_b32 v{vt}, -1, v{vt}",
            f"s_sub_u32 s{st+3}, s{st+2}, 1", f"v_min_u32 v{vt}, s{st+3}, v{vt}",
            f"s_mul_i32 s{st+2}, s{st+2}, s{s_wv}", f"v_add_u32 v{vt}, s{st+2}, v{vt}", f"v_lshlrev_b32 v{vt}, 7, v{vt}",
            f"s_mov_b32 s{st+3}, {end_label}-{label}-4", f"v_min_u32 v{vt}, s{st+3}, v{vt}",
            ("VM", f"global_load_dword {dst}, v{vt}, s[{st}:{st+1}]", ("t", 98))]
```

```python
from asmlib import Asm
from layout import *
from common import *

def allreduce32(a, v, t):
    for ctl in ("quad_perm:[1,0,3,2]", "quad_perm:[2,3,0,1]", "row_half_mirror", "row_mirror"):
        a("s_nop 1")
        a(f"v_add_f32_dpp v{v}, v{v}, v{v} {ctl} row_mask:0xf bank_mask:0xf")
    a(f"ds_swizzle_b32 v{t}, v{v} offset:0x401F")
    a("s_waitcnt lgkmcnt(0)")
    a(f"v_add_f32 v{v}, v{v}, v{t}")

import os
NTOUCH_ROWS = int(os.environ.get('NTR', '128'))
EXP0 = os.environ.get('EXP0', '')
def touch_w(a, vt, uid):
    if "notouch" in EXP0:
        a(f"v_mov_b32 v{vt}, 0\nbuffer_load_dword v{vt+3}, v{vt}, s[12:15], 0 offen\nbuffer_load_dword v{vt+3}, v{vt}, s[12:15], 0 offen")
        return
    if ("lnonly" in EXP0 and uid == "b") or ("preponly" in EXP0 and uid == "a"):
        a(f"v_mov_b32 v{vt}, 0\nbuffer_load_dword v{vt+3}, v{vt}, s[12:15], 0 offen\nbuffer_load_dword v{vt+3}, v{vt}, s[12:15], 0 offen")
        return
    nlines = NTOUCH_ROWS * 18; per = -(-nlines // 64)
    assert per <= 64
    a(f"""
    s_load_dwordx2 s[84:85], s[0:1], {K_WG}
    s_load_dwordx2 s[88:89], s[0:1], {K_WU}
    v_lshrrev_b32 v{vt}, 6, v0
    s_lshr_b32 s92, s2, 3
    s_lshl_b32 s92, s92, 2
    v_readfirstlane_b32 s93, v{vt}
    s_add_u32 s92, s92, s93
    s_and_b32 s94, s92, 1
    s_lshr_b32 s92, s92, 1
    s_mul_i32 s92, s92, {per}
    v_and_b32 v{vt}, 63, v0
    v_add_u32 v{vt+1}, s92, v{vt}
    s_mov_b32 s95, 0xe38e38f
    v_mul_hi_u32 v{vt+2}, v{vt+1}, s95
    v_mul_u32_u24 v{vt+3}, 18, v{vt+2}
    v_sub_u32 v{vt+3}, v{vt+1}, v{vt+3}
    v_mul_u32_u24 v{vt+2}, 9216, v{vt+2}
    v_lshl_add_u32 v{vt+2}, v{vt+3}, 7, v{vt+2}
    s_and_b32 s95, s2, 7
    s_lshr_b32 s95, s95, 1
    s_mul_i32 s95, s95, 2304
    v_add_u32 v{vt+2}, s95, v{vt+2}
    v_cmp_gt_u32 vcc, {per}, v{vt}
    v_mov_b32 v{vt+3}, {OOB}
    s_waitcnt lgkmcnt(0)
    v_cndmask_b32 v{vt+2}, v{vt+3}, v{vt+2}, vcc
    s_cmp_eq_u32 s94, 0
    s_cselect_b32 s84, s84, s88
    s_cselect_b32 s85, s85, s89
    s_and_b32 s85, s85, 0xffff
    s_mov_b32 s86, {NTOUCH_ROWS*9216}
    s_mov_b32 s87, 0x20000
    buffer_load_dword v{vt+3}, v{vt+2}, s[84:87], 0 offen
    s_lshr_b32 s92, s2, 3
    s_lshl_b32 s92, s92, 2
    s_add_u32 s92, s92, s93
    """)
    for ins in touch_code_ins("k1_kernel", "k1_kernel_end", 128, 92, vt, 88, f"v{vt+1}", uid):
        a(ins[1] if isinstance(ins, tuple) else ins)

def role_ln(a):
    stamp(a, 0)
    srd(a, 8, 4, SZ_X); srd(a, 12, 6, WS_END)
    a("""
    v_lshrrev_b32 v1, 5, v0
    v_and_b32 v2, 31, v0
    s_lshr_b32 s16, s2, 2
    s_and_b32 s17, s2, 3
    s_lshl_b32 s17, s17, 3
    s_lshr_b32 s18, s16, 3
    s_and_b32 s19, s16, 7
    s_and_b32 s20, s18, 3
    s_lshl_b32 s20, s20, 3
    s_add_u32 s20, s20, s19
    s_lshr_b32 s21, s18, 2
    s_lshl_b32 s21, s21, 10
    s_add_u32 s20, s20, s21
    s_lshl_b32 s21, s17, 5
    s_add_u32 s20, s20, s21
    v_lshlrev_b32 v3, 5, v1
    v_add_u32 v3, s20, v3
    v_mul_u32_u24 v3, 1152, v3
    v_lshlrev_b32 v4, 4, v2
    v_add_u32 v3, v3, v4
    v_cmp_gt_u32 vcc, 24, v2
    v_mov_b32 v5, 0x7f000000
    s_nop 0
    v_cndmask_b32 v3, v5, v3, vcc
    buffer_load_dwordx4 v[8:11], v3, s[8:11], 0 offen
    buffer_load_dwordx4 v[12:15], v3, s[8:11], 0 offen offset:384
    buffer_load_dwordx4 v[16:19], v3, s[8:11], 0 offen offset:768
    """)
    touch_w(a, 60, 'a')
    a("v_cmp_gt_u32 vcc, 24, v2")
    a(f"""
    v_add_u32 v7, s17, v1
    v_lshrrev_b32 v6, 4, v7
    s_lshl_b32 s22, s16, 1
    v_add_u32 v6, s22, v6
    v_mul_u32_u24 v6, 18432, v6
    v_and_b32 v7, 15, v7
    v_and_b32 v44, 3, v2
    v_lshl_add_u32 v7, v44, 4, v7
    v_lshl_add_u32 v6, v7, 4, v6
    v_lshrrev_b32 v44, 2, v2
    v_lshl_add_u32 v6, v44, 10, v6
    v_add_u32 v6, {XN}, v6
    v_cndmask_b32 v6, v5, v6, vcc
    s_mov_b32 s23, 6144
    s_mov_b32 s24, 12288
    s_mov_b32 s25, 0x3ae38e39
    s_mov_b32 s26, 0x3727c5ac
    s_mov_b32 s27, 0xffff0000
    s_waitcnt vmcnt(2)
    """)
    stamp(a, 1)
    X = 20
    a("v_mov_b32 v47, 0x3f803f80")
    for i in range(4): a(f"v_mov_b32 v{44+i if i < 3 else 48}, 0")
    for i in range(12): a(f"v_dot2c_f32_bf16 v{44 + i % 3}, v{8+i}, v47")
    for i in range(12):
        a(f"v_lshlrev_b32 v{X+2*i}, 16, v{8+i}\nv_and_b32 v{X+2*i+1}, s27, v{8+i}")
    a("v_add_f32 v44, v44, v45\nv_add_f32 v44, v44, v46")
    allreduce32(a, 44, 45)
    a("v_mul_f32 v44, s25, v44")
    for i in range(24): a(f"v_sub_f32 v{X+i}, v{X+i}, v44")
    for i in range(4): a(f"v_mul_f32 v{52+i}, v{X+i}, v{X+i}")
    for k in range(1, 6):
        for i in range(4): a(f"v_fmac_f32 v{52+i}, v{X+4*k+i}, v{X+4*k+i}")
    a("v_add_f32 v52, v52, v53\nv_add_f32 v54, v54, v55\nv_add_f32 v52, v52, v54")
    a("v_cndmask_b32 v52, 0, v52, vcc")
    allreduce32(a, 52, 45)
    a("""
    v_mul_f32 v52, s25, v52
    v_cvt_pk_bf16_f32 v46, v44, v52
    v_lshlrev_b32 v45, 16, v46
    v_and_b32 v52, s27, v46
    v_add_f32 v52, s26, v52
    v_cvt_pk_bf16_f32 v52, v52, v52
    v_and_b32 v52, s27, v52
    v_sqrt_f32 v52, v52
    v_sub_f32 v45, v44, v45
    v_cvt_pk_bf16_f32 v52, v52, v52
    v_and_b32 v52, s27, v52
    v_rcp_f32 v52, v52
    s_nop 0
    v_mul_f32 v45, v45, v52
    """)
    for i in range(24): a(f"v_fma_f32 v{X+i}, v{X+i}, v52, v45")
    for i in range(12):
        a(f"v_cvt_pk_bf16_f32 v{8+i}, v{X+2*i}, v{X+2*i+1}")
    a("""
    buffer_store_dwordx4 v[8:11], v6, s[12:15], 0 offen
    buffer_store_dwordx4 v[12:15], v6, s[12:15], s23 offen
    buffer_store_dwordx4 v[16:19], v6, s[12:15], s24 offen
    """)
    stamp(a, 2)
    stamps_out(a, 4, 0, 12, 50)
    a("s_endpgm")

def cosvals(a, n, first, step_reg, inv, phases, dst, tmp):
    for e in range(n):
        src = first if e == 0 else tmp
        if e == 1: a(f"v_add_f32 v{tmp}, v{first}, v{step_reg}")
        elif e > 1: a(f"v_add_f32 v{tmp}, v{tmp}, v{step_reg}")
        a(f"v_fma_f32 v{dst+e}, v{src}, {inv}, {phases[e]}")
        a(f"v_fract_f32 v{dst+e}, v{dst+e}")
        a(f"v_cos_f32 v{dst+e}, v{dst+e}")

def role_prep(a):
    stamp(a, 0)
    srd(a, 8, 4, SZ_W); srd(a, 12, 6, WS_END); srd(a, 16, 28, SZ_W)
    a("""
    s_sub_u32 s20, s2, 256
    s_and_b32 s21, s20, 7
    s_lshr_b32 s22, s20, 3
    s_and_b32 s23, s21, 3
    s_lshr_b32 s24, s21, 2
    s_lshl_b32 s25, s23, 3
    s_and_b32 s26, s22, 7
    s_add_u32 s25, s25, s26
    s_lshr_b32 s26, s22, 3
    s_and_b32 s26, s26, 1
    s_lshr_b32 s27, s22, 4
    """)
    a("""
    s_lshl_b32 s30, s27, 10
    s_lshl_b32 s31, s24, 8
    s_add_u32 s30, s30, s31
    s_lshl_b32 s31, s26, 5
    s_add_u32 s30, s30, s31
    s_add_u32 s30, s30, s25
    s_mul_i32 s30, s30, 578
    """)
    for e in range(8):
        off = 36992 * (8 * (e // 4) + e % 4)
        a(f"s_add_u32 s{32+e}, s30, {off}")
    a(f"""
    s_lshl_b32 s40, s26, 12
    s_lshl_b32 s41, s27, 10
    s_add_u32 s40, s40, s41
    s_lshl_b32 s41, s24, 5
    s_add_u32 s41, s41, s25
    s_lshl_b32 s41, s41, 4
    s_add_u32 s40, s40, s41
    s_add_u32 s40, s40, {WT}
    s_add_u32 s41, s40, 2048
    v_lshlrev_b32 v1, 1, v0
    v_lshlrev_b32 v2, 13, v0
    v_lshrrev_b32 v3, 6, v0
    s_nop 0
    v_readfirstlane_b32 s42, v3
    """)
    for part, sr in ((0, 8), (1, 16)):
        for e in range(8):
            a(f"buffer_load_ushort v{8+8*part+e}, v1, s[{sr}:{sr+3}], s{32+e} offen")
    a("""
    s_cmp_lg_u32 s42, 0
    s_cbranch_scc1 K0_nohalf
    v_cmp_gt_u32 vcc, 33, v0
    v_mov_b32 v5, 0x7f000000
    v_add_u32 v4, 512, v1
    v_add_u32 v6, 0x200000, v2
    v_cndmask_b32 v4, v5, v4, vcc
    v_cndmask_b32 v6, v5, v6, vcc
    """)
    for part, sr in ((0, 8), (1, 16)):
        for e in range(8):
            a(f"buffer_load_ushort v{24+8*part+e}, v4, s[{sr}:{sr+3}], s{32+e} offen")
    a("s_waitcnt vmcnt(0)")
    for part in range(2):
        for i in range(4):
            a(f"v_lshl_or_b32 v{40+4*part+i}, v{24+8*part+2*i+1}, 16, v{24+8*part+2*i}")
    a("""
    buffer_store_dwordx4 v[40:43], v6, s[12:15], s40 offen
    buffer_store_dwordx4 v[44:47], v6, s[12:15], s41 offen
    """)
    a.label("K0_nohalf")
    a("""
    s_cmp_eq_u32 s42, 3
    s_cbranch_scc1 K0_small
    s_mul_i32 s43, s20, 162
    v_add_u32 v50, s43, v0
    v_lshrrev_b32 v51, 6, v50
    v_and_b32 v52, 63, v50
    v_mul_u32_u24 v53, 3641, v51
    v_lshrrev_b32 v53, 16, v53
    v_mul_u32_u24 v54, 18, v53
    v_sub_u32 v54, v51, v54
    v_and_b32 v55, 15, v52
    v_lshrrev_b32 v56, 4, v52
    s_mov_b32 s44, 0x3ae38e39
    v_lshlrev_b32 v57, 4, v50
    v_cmp_gt_u32 vcc, 162, v0
    v_mov_b32 v5, 0x7f000000
    s_nop 0
    v_cndmask_b32 v57, v5, v57, vcc
    """)
    a("""
    v_lshl_add_u32 v58, v53, 4, v55
    v_lshrrev_b32 v59, 1, v58
    v_and_b32 v60, 1, v58
    v_cmp_eq_u32 vcc, 1, v58
    v_mov_b32 v61, 288
    s_nop 0
    v_cndmask_b32 v59, v59, v61, vcc
    v_cndmask_b32 v60, v60, 0, vcc
    v_cvt_f32_u32 v60, v60
    v_mul_f32 v60, 0.25, v60
    v_lshlrev_b32 v61, 5, v54
    v_lshl_add_u32 v61, v56, 3, v61
    v_mul_u32_u24 v61, v61, v59
    v_cvt_f32_u32 v61, v61
    v_cvt_f32_u32 v59, v59
    """.replace("v_mul_f32 v60, 0.25, v60", "v_mul_f32 v60, 0x3e800000, v60"))
    a("s_nop 0")
    cosvals(a, 8, 61, 59, "s44", ["v60"] * 8, 64, 62)
    a("s_nop 0")
    for i in range(4): a(f"v_cvt_pk_bf16_f32 v{72+i}, v{64+2*i}, v{64+2*i+1}")
    a(f"s_mov_b32 s45, {FF}\nbuffer_store_dwordx4 v[72:75], v57, s[12:15], s45 offen")
    a("""
    v_lshl_add_u32 v58, v53, 4, v55
    v_lshlrev_b32 v59, 4, v54
    v_lshl_add_u32 v59, v56, 2, v59
    v_mul_u32_u24 v61, v59, v58
    v_cvt_f32_u32 v61, v61
    v_cvt_f32_u32 v58, v58
    v_cmp_eq_u32 vcc, 0, v59
    v_mov_b32 v60, 0x3e800000
    v_mov_b32 v63, 0
    """)
    for i in range(4):
        src = 61 if i == 0 else 62
        if i == 1: a("v_add_f32 v62, v61, v58")
        elif i > 1: a("v_add_f32 v62, v62, v58")
        for p in range(2):
            a(f"v_fma_f32 v{64+2*i+p}, v{src}, s44, v{60 if p else 63}")
            a(f"v_fract_f32 v{64+2*i+p}, v{64+2*i+p}")
            a(f"v_cos_f32 v{64+2*i+p}, v{64+2*i+p}")
    a("""
    v_cndmask_b32 v76, 2.0, 1.0, vcc
    v_cndmask_b32 v77, 2.0, 0, vcc
    v_mul_f32 v64, v64, v76
    v_mul_f32 v65, v65, v77
    """)
    for e in range(2, 8): a(f"v_add_f32 v{64+e}, v{64+e}, v{64+e}")
    for i in range(4): a(f"v_cvt_pk_bf16_f32 v{80+i}, v{64+2*i}, v{64+2*i+1}")
    a(f"s_mov_b32 s45, {FI}\nbuffer_store_dwordx4 v[80:83], v57, s[12:15], s45 offen")
    a("s_branch K0_wstore")
    a.label("K0_small")
    a(f"""
    s_cmp_ge_u32 s20, 86
    s_cbranch_scc1 K0_wstore
    v_and_b32 v52, 63, v0
    v_and_b32 v55, 31, v52
    v_lshrrev_b32 v56, 5, v52
    v_lshlrev_b32 v57, 4, v52
    s_lshl_b32 s45, s20, 10
    s_add_u32 s45, s45, {TAB}
    s_cmp_ge_u32 s20, 54
    s_cbranch_scc1 K0_tw
    """)
    a("""
    s_cmp_ge_u32 s20, 48
    s_cbranch_scc1 K0_f32
    s_cmp_ge_u32 s20, 24
    s_cselect_b32 s52, 24, 0
    s_sub_u32 s52, s20, s52
    s_lshr_b32 s46, s52, 3
    s_lshr_b32 s47, s52, 2
    s_and_b32 s47, s47, 1
    s_and_b32 s53, s52, 3
    s_lshl_b32 s48, s53, 4
    s_mov_b32 s54, 8
    s_mov_b32 s49, 63
    s_mov_b32 s50, 0x3c800000
    s_cmp_ge_u32 s20, 24
    s_cbranch_scc1 K0_f64
    s_lshr_b32 s48, s53, 1
    s_lshl_b32 s48, s48, 5
    s_and_b32 s53, s53, 1
    s_lshl_b32 s53, s53, 3
    s_add_u32 s48, s48, s53
    s_mov_b32 s54, 16
    s_branch K0_f64
    """)
    a.label("K0_f32")
    a("""
    s_sub_u32 s52, s20, 48
    s_lshr_b32 s46, s52, 1
    s_mov_b32 s47, 0
    s_and_b32 s48, s52, 1
    s_lshl_b32 s48, s48, 4
    s_mov_b32 s54, 8
    s_mov_b32 s49, 31
    s_mov_b32 s50, 0x3d000000
    """)
    a.label("K0_f64")
    a("""
    s_mov_b32 s51, 0
    s_cmp_eq_u32 s46, 1
    s_cselect_b32 s51, 0x3f400000, s51
    s_cmp_eq_u32 s46, 2
    s_cselect_b32 s51, 0x3e800000, s51
    s_lshl_b32 s47, s47, 5
    v_add_u32 v58, s47, v55
    v_lshlrev_b32 v59, 2, v56
    v_add_u32 v59, s48, v59
    v_add_u32 v62, s54, v59
    v_mov_b32 v60, s51
    """)
    for e in range(8):
        a(f"v_add_u32 v61, {e%4}, v{59 if e < 4 else 62}")
        a("v_mul_u32_u24 v61, v61, v58")
        a("v_and_b32 v61, s49, v61")
        a("v_cvt_f32_u32 v61, v61")
        a(f"v_fma_f32 v{64+e}, v61, s50, v60")
        a(f"v_fract_f32 v{64+e}, v{64+e}")
        a(f"v_cos_f32 v{64+e}, v{64+e}")
    a("s_nop 0")
    for i in range(4): a(f"v_cvt_pk_bf16_f32 v{72+i}, v{64+2*i}, v{64+2*i+1}")
    a("buffer_store_dwordx4 v[72:75], v57, s[12:15], s45 offen\ns_branch K0_wstore")
    a.label("K0_tw")
    a("""
    s_sub_u32 s46, s20, 54
    s_and_b32 s47, s46, 15
    s_lshr_b32 s48, s47, 3
    s_lshl_b32 s48, s48, 5
    s_lshr_b32 s49, s47, 2
    s_and_b32 s49, s49, 1
    s_and_b32 s50, s47, 3
    s_lshl_b32 s50, s50, 3
    s_cmp_ge_u32 s46, 16
    s_cselect_b32 s51, s48, 0
    s_cselect_b32 s52, 0, s48
    s_add_u32 s50, s50, s51
    s_cmp_eq_u32 s49, 1
    s_cselect_b32 s51, 0x3f400000, 0
    s_mov_b32 s53, 0x3a000000
    v_add_u32 v58, s52, v55
    v_lshlrev_b32 v59, 2, v56
    v_add_u32 v59, s50, v59
    v_mov_b32 v60, s51
    """)
    for x in range(4):
        a(f"v_add_u32 v61, {x}, v59")
        a("v_mul_u32_u24 v61, v61, v58")
        a("v_cvt_f32_u32 v61, v61")
        a(f"v_fma_f32 v{64+x}, v61, s53, v60")
        a(f"v_fract_f32 v{64+x}, v{64+x}")
        a(f"v_cos_f32 v{64+x}, v{64+x}")
    a("s_nop 0\nbuffer_store_dwordx4 v[64:67], v57, s[12:15], s45 offen")
    a.label("K0_wstore")
    stamp(a, 1)
    a("s_waitcnt vmcnt(0)")
    stamp(a, 2)
    for part in range(2):
        for i in range(4):
            a(f"v_lshl_or_b32 v{40+4*part+i}, v{8+8*part+2*i+1}, 16, v{8+8*part+2*i}")
    a("""
    buffer_store_dwordx4 v[40:43], v2, s[12:15], s40 offen
    buffer_store_dwordx4 v[44:47], v2, s[12:15], s41 offen
    """)
    stamps_out(a, 4, 0, 12, 50)
    a("s_endpgm")

def k0(name="k0_kernel"):
    a = Asm()
    a(f"""
    s_getpc_b64 s[8:9]
    K0_pc:
    v_mbcnt_lo_u32_b32 v1, -1, 0
    v_mbcnt_hi_u32_b32 v1, -1, v1
    v_lshlrev_b32 v1, 7, v1
    s_mov_b32 s10, k0_kernel_end-K0_pc-4
    v_min_u32 v1, s10, v1
    global_load_dword v95, v1, s[8:9]
    """)
    a(f"""
    s_cmp_ge_u32 s2, 512
    s_cbranch_scc1 K0_exit
    s_load_dwordx2 s[6:7], s[0:1], {K_WS}
    s_cmp_ge_u32 s2, 256
    s_cbranch_scc1 K0_prep
    s_load_dwordx2 s[4:5], s[0:1], {K_X}
    s_waitcnt lgkmcnt(0)
    """)
    role_ln(a)
    a.label("K0_prep")
    a(f"""
    s_load_dwordx2 s[4:5], s[0:1], {K_WR}
    s_load_dwordx2 s[28:29], s[0:1], {K_WI}
    s_waitcnt lgkmcnt(0)
    """)
    role_prep(a)
    a.label("K0_exit")
    a("s_endpgm")
    return a
```

```python
from asmlib import Asm
from layout import *
from common import *
import os

STAGE = 20480
UPOFF = 9216
FFOFF = 18432
NR = 7
PW = 6
PX = 6
NXS = 7
NP1 = 12
LA = 3
NB = 5
import os
HST = os.environ.get('HST', '')
NST = 18
V_TR, V_FFB, V_DMA, V_X, V_H, V_Y, V_T = 2, 5, 8, 13, 14, 15, 16
V_TCH = 1
A_DUMMY = 228
TOUCH_AHEAD = 7
ISSUE = [int(c) for c in os.environ.get('ISSUE', '111212121211')]
V_WDT = 0
A_X, A_F = 96, 208

def acc(tau, i):
    blk = 4 * tau + i
    return ("v", 32 + 4 * blk) if blk < 56 else ("a", 4 * (blk - 56))
def accr(tau, i):
    f, b = acc(tau, i); return f"{f}[{b}:{b+3}]"
def xfrag(T, i):
    b = A_X + (T % NXS) * 16 + 4 * i; return f"a[{b}:{b+3}]"

S_SRD = {0: 8, 1: 8, 2: 20, 3: 12, 4: 24}
S_SRCW, S_SRC4 = 28, 29
S_DST = 33
S_INC4 = 38
S_X = 39
S_TMP = 43
S_K = 44
S_FG = 48
S_FT, S_MT, S_W = 53, 54, 52

def setup(a):
    a(f"""
    s_cmp_ge_u32 s2, 256
    s_cbranch_scc1 K1_exit
    s_load_dwordx2 s[4:5], s[0:1], {K_WG}
    s_load_dwordx2 s[6:7], s[0:1], {K_WU}
    s_load_dwordx2 s[50:51], s[0:1], {K_WS}
    v_and_b32 v1, 63, v0
    v_lshrrev_b32 v16, 6, v0
    s_and_b32 s55, s2, 7
    s_lshr_b32 s56, s2, 3
    v_readfirstlane_b32 s52, v16
    s_lshr_b32 s53, s55, 1
    s_lshl_b32 s53, s53, 3
    s_and_b32 s54, s56, 7
    s_add_u32 s53, s53, s54
    s_and_b32 s54, s55, 1
    s_lshl_b32 s54, s54, 2
    s_lshr_b32 s55, s56, 3
    s_add_u32 s54, s54, s55
    """)
    a(f"""
    s_lshl_b32 s55, s54, 4
    s_lshl_b32 s56, s52, 2
    s_add_u32 s55, s55, s56
    s_mul_i32 s56, s55, 18432
    s_add_u32 s56, s56, {XN}
    v_lshlrev_b32 v16, 4, v1
    v_add_u32 v{V_X}, s56, v16
    s_mul_i32 s56, s55, 147456
    s_add_u32 s56, s56, {H}
    v_add_u32 v{V_H}, s56, v16
    s_mov_b32 s{S_X}, 0
    s_mov_b32 s{S_X+1}, 18432
    s_mov_b32 s{S_X+2}, 36864
    s_mov_b32 s{S_X+3}, 55296
    s_mul_i32 s{S_FG}, s53, 9
    """)
    a("s_mul_i32 s55, s53, 288\ns_mov_b32 s61, 0xe38e38f")
    for i in range(5):
        a(f"""
        s_add_u32 s56, s52, {4*i}
        s_sub_u32 s57, s56, 9
        s_cmp_lt_u32 s56, 9
        s_cselect_b32 s58, s56, s57
        s_cselect_b32 s59, 0, {UPOFF}
        s_lshl_b32 s60, s58, 10
        s_add_u32 s{S_DST+i}, s60, s59
        s_lshl_b32 s58, s58, 6
        v_add_u32 v16, s58, v1
        v_mul_hi_u32 v17, v16, s61
        v_mul_u32_u24 v18, 18, v17
        v_sub_u32 v18, v16, v18
        v_and_b32 v19, 0x13, v17
        v_bfe_u32 v20, v17, 2, 1
        v_lshl_or_b32 v19, v20, 3, v19
        v_bfe_u32 v20, v17, 3, 1
        v_lshl_or_b32 v19, v20, 2, v19
        v_mul_u32_u24 v19, 9216, v19
        v_lshl_add_u32 v19, v18, 4, v19
        v_add_u32 v{V_DMA+i}, s55, v19
        """)
    a(f"""
    s_cmp_lt_u32 s52, 2
    s_cbranch_scc1 K1_noff
    s_add_u32 s56, s53, 32
    s_cmp_lt_u32 s53, 4
    s_cselect_b32 s56, s56, s53
    s_cmp_eq_u32 s52, 2
    s_cselect_b32 s56, s53, s56
    s_mul_i32 s56, s56, 18432
    s_add_u32 s56, s56, {FF}
    v_lshlrev_b32 v16, 4, v1
    v_add_u32 v{V_DMA+4}, s56, v16
    s_sub_u32 s56, s52, 2
    s_lshl_b32 s56, s56, 10
    s_add_u32 s{S_DST+4}, s56, {FFOFF}
    """)
    a.label("K1_noff")
    a(f"""
    v_and_b32 v16, 15, v1
    s_lshl_b32 s55, s53, 4
    v_add_u32 v17, s55, v16
    v_lshlrev_b32 v17, 12, v17
    v_lshrrev_b32 v18, 5, v1
    v_lshl_add_u32 v17, v18, 10, v17
    v_bfe_u32 v18, v1, 4, 1
    v_lshlrev_b32 v18, 5, v18
    s_and_b32 s56, s54, 3
    s_lshl_b32 s56, s56, 3
    s_lshl_b32 s57, s52, 1
    s_add_u32 s56, s56, s57
    v_add_u32 v18, s56, v18
    v_lshl_add_u32 v17, v18, 4, v17
    s_lshr_b32 s56, s54, 2
    s_lshl_b32 s56, s56, 11
    s_add_u32 s56, s56, {YT}
    v_add_u32 v{V_Y}, s56, v17
    """)
    a(f"""
    v_lshrrev_b32 v16, 5, v1
    v_lshlrev_b32 v16, 4, v16
    v_bfe_u32 v17, v1, 4, 1
    v_lshl_add_u32 v16, v17, 2, v16
    v_bfe_u32 v17, v1, 2, 2
    v_add_u32 v16, v16, v17
    v_mul_u32_u24 v16, 288, v16
    v_and_b32 v18, 3, v1
    v_lshl_add_u32 v{V_TR}, v18, 3, v16
    v_add_u32 v{V_TR+1}, {3*STAGE}, v{V_TR}
    v_add_u32 v{V_TR+2}, {6*STAGE}, v{V_TR}
    v_lshlrev_b32 v{V_FFB}, 4, v1
    v_add_u32 v{V_FFB+1}, {3*STAGE}, v{V_FFB}
    v_add_u32 v{V_FFB+2}, {6*STAGE}, v{V_FFB}
    s_mov_b32 s{S_K}, 0xbfb8aa3b
    s_mov_b32 s{S_K+1}, 0xbfb8aa3b
    s_mov_b32 s{S_K+2}, 1.0
    s_mov_b32 s{S_K+3}, 1.0
    s_mov_b32 s{S_SRCW}, 0
    s_mov_b32 s{S_SRC4}, 0
    s_mov_b32 s{S_INC4}, 1024
    s_cmp_lt_u32 s52, 2
    s_cselect_b32 s{S_INC4}, 294912, s{S_INC4}
    s_cmp_lt_u32 s53, 4
    s_cselect_b64 vcc, -1, 0
    """)
    a(f"""
    s_mov_b32 s55, 0x1c71c71d
    v_mul_hi_u32 v16, v1, s55
    v_mul_u32_u24 v17, 9, v16
    v_sub_u32 v17, v1, v17
    s_and_b32 s55, s52, 1
    s_mul_i32 s55, s55, 9
    v_add_u32 v17, s55, v17
    v_lshlrev_b32 v17, 7, v17
    s_lshr_b32 s55, s2, 3
    s_mul_i32 s55, s55, 9216
    s_and_b32 s56, s2, 7
    s_lshr_b32 s56, s56, 1
    s_mul_i32 s56, s56, 2304
    s_add_u32 s55, s55, s56
    v_add_u32 v17, s55, v17
    s_mov_b32 s55, 294912
    v_mul_lo_u32 v18, v16, s55
    v_add_u32 v18, v17, v18
    v_mov_b32 v19, {OOB}
    v_cmp_gt_u32 s[62:63], 27, v1
    v_cmp_gt_u32 s[98:99], 9, v1
    s_load_dwordx2 s[96:97], s[0:1], {K_WD}
    s_nop 0
    v_cndmask_b32 v20, v19, v18, s[62:63]
    v_cndmask_b32 v{V_TCH}, v19, v17, s[98:99]
    s_mov_b32 s98, {(TOUCH_AHEAD+2)*294912}
    s_mov_b32 s99, {3*294912}
    s_lshr_b32 s55, s2, 3
    s_lshl_b32 s55, s55, 2
    s_add_u32 s55, s55, s52
    s_mul_i32 s55, s55, 81
    v_mbcnt_lo_u32_b32 v16, -1, 0
    v_mbcnt_hi_u32_b32 v16, -1, v16
    v_add_u32 v17, s55, v16
    v_lshlrev_b32 v17, 7, v17
    s_and_b32 s55, s2, 7
    s_lshr_b32 s55, s55, 1
    s_mul_i32 s55, s55, {1152*1152}
    v_add_u32 v17, s55, v17
    v_cmp_gt_u32 s[62:63], 14, v16
    s_mov_b32 s100, 0
    s_waitcnt lgkmcnt(0)
    v_cndmask_b32 v{V_WDT}, v19, v17, s[62:63]
    """)
    srd(a, 16, 50, WS_END); srd(a, 8, 4, SZ_G); srd(a, 12, 6, SZ_G)
    a("s_cmp_lt_u32 s52, 2")
    for i in range(3): a(f"s_cselect_b32 s{92+i}, s{8+i}, s{12+i}")
    a("s_mov_b32 s95, 0x20000")
    a("s_cmp_eq_u32 s52, 0")
    for i in range(3): a(f"s_cselect_b32 s{20+i}, s{8+i}, s{12+i}")
    a("s_cmp_lt_u32 s52, 2")
    for i in range(3): a(f"s_cselect_b32 s{24+i}, s{12+i}, s{16+i}")
    a("s_mov_b32 s23, 0x20000\ns_mov_b32 s27, 0x20000")

def dma_ins(s, i):
    slot = s % NR; sr = S_SRD[i]; so = S_SRC4 if i == 4 else S_SRCW
    out = [f"s_add_u32 m0, s{S_DST+i}, {slot*STAGE}",
           ("VM", f"buffer_load_dwordx4 v{V_DMA+i}, s[{sr}:{sr+3}], s{so} offen lds", ("w", s))]
    if i == 3: out.append(f"s_add_u32 s{S_SRCW}, s{S_SRCW}, 294912") if False else None
    return out
def dma_group(s):
    out = []
    for i in (4, 0, 1, 2, 3):
        out += dma_ins(s, i)
        if i == 4: out.append(f"s_add_u32 s{S_SRC4}, s{S_SRC4}, s{S_INC4}")
    out.append(f"s_add_u32 s{S_SRCW}, s{S_SRCW}, 294912")
    return out
def x_group(T):
    out = []
    for i in range(4):
        out.append(("VM", f"buffer_load_dwordx4 {xfrag(T, i)}, v{V_X}, s[16:19], s{S_X+i} offen offset:{(T%4)*1024}", ("x", T)))
        if T % 4 == 3: out.append(f"s_add_u32 s{S_X+i}, s{S_X+i}, 4096")
    return out
def put(a, ins, pad=False):
    if isinstance(ins, tuple):
        if " lds" in ins[1] and a.lines[-1].startswith("s_add_u32 m0"): a("s_nop 0")
        a.vmem(ins[1], ins[2])
    elif ins.startswith("LABEL "): a.label(ins[6:])
    else:
        a(ins)

def frag_read_ins(n, tau, T):
    fb = A_F + 4 * (n % NB)
    slot = T % NR
    third, rem = slot // 3, (slot % 3) * STAGE
    if tau < 18:
        j, mat = tau // 2, tau % 2
        return [f"ds_read_b64_tr_b16 a[{fb+2*rho}:{fb+2*rho+1}], v{V_TR+third} offset:{rem + mat*UPOFF + rho*2304 + 32*j}" for rho in range(2)]
    return [f"ds_read_b128 a[{fb}:{fb+3}], v{V_FFB+third} offset:{rem+FFOFF+(tau-18)*1024}"]

def mfma(a, n, tau, T, i):
    fb = A_F + 4 * (n % NB); fr = f"a[{fb}:{fb+3}]"
    c = "0" if T == 0 else accr(tau, i)
    if tau < 18: a(f"v_mfma_f32_16x16x32_bf16 {accr(tau, i)}, {fr}, {xfrag(T, i)}, {c}")
    else:        a(f"v_mfma_f32_16x16x32_bf16 {accr(tau, i)}, {xfrag(T, i)}, {fr}, {c}")

def epi_glu(j, ip, setid):
    T = V_T + 8 * setid; U = V_T + 8 * (1 - setid); out = []
    for h in range(2):
        f, b = acc(2 * j, 2 * ip + h)
        for e in range(4):
            if f == "a":
                out.append(f"v_accvgpr_read_b32 v{T+4*h+e}, a{b+e}")
        for e in range(4):
            out.append(f"v_mul_f32 v{T+4*h+e}, s{S_K}, v{(T+4*h if f == 'a' else b)+e}")
    for e in range(8): out.append(f"v_exp_f32 v{T+e}, v{T+e}")
    for e in range(8): out.append(f"v_add_f32 v{T+e}, 1.0, v{T+e}")
    for e in range(8): out.append(f"v_rcp_f32 v{T+e}, v{T+e}")
    for h in range(2):
        f, b = acc(2 * j + 1, 2 * ip + h)
        if f == "a":
            for e in range(4): out.append(f"v_accvgpr_read_b32 v{U+4*h+e}, a{b+e}")
            b = U + 4 * h
        for e in range(4): out.append(f"v_mul_f32 v{T+4*h+e}, v{T+4*h+e}, v{b+e}")
    for i in range(4): out.append(f"v_cvt_pk_bf16_f32 v{T+i}, v{T+2*i}, v{T+2*i+1}")
    for h in range(2):
        out.append(f"s_add_u32 s{S_TMP}, s49, {(2*ip+h)*147456}")
        out.append(f"STORE buffer_store_dwordx2 v[{T+2*h}:{T+2*h+1}], v{V_H}, s[16:19], s{S_TMP} offen{HST}")
    return out

def epi_j_offset(j):
    return [f"s_add_u32 s55, s{S_FG}, {j}", "s_lshr_b32 s49, s55, 1", "s_lshl_b32 s49, s49, 10",
            "s_and_b32 s55, s55, 1", "s_lshl_b32 s55, s55, 3", "s_add_u32 s49, s49, s55"]

def epi_dft(tile):
    out = []
    for rb in range(2):
        T = V_T + 8 * rb
        for h in range(2):
            f, b = acc(18 + tile, 2 * rb + h)
            for e in range(4): out.append(f"v_accvgpr_read_b32 v{T+4*h+e}, a{b+e}")
        for i in range(4): out.append(f"v_cvt_pk_bf16_f32 v{T+i}, v{T+2*i}, v{T+2*i+1}")
        out.append(f"s_mov_b32 s{S_TMP}, {tile*0x200000}")
        out.append(f"STORE buffer_store_dwordx4 v[{T}:{T+3}], v{V_Y}, s[16:19], s{S_TMP} offen offset:{rb*16}{HST}")
    return out

def emit(a, ins):
    if ins.startswith("STORE "): a.vmem(ins[6:], ("st",))
    else: a(ins)

def wd_touch(first):
    out = []
    if first: out += ["s_mov_b32 s56, s96", "s_and_b32 s57, s97, 0xffff", f"s_mov_b32 s58, {SZ_G}", "s_mov_b32 s59, 0x20000"]
    out += [("VM", f"buffer_load_dword a{A_DUMMY+1}, v{V_WDT}, s[56:59], s100 offen", ("t", 99)), f"s_add_u32 s100, s100, {14*128}"]
    return out

def k1():
    a = Asm()
    stamp(a, 0)
    setup(a)
    stamp(a, 1)
    NPRO = 2
    for ins in x_group(0) + dma_group(0): put(a, ins)
    for ins in x_group(1) + dma_group(1): put(a, ins)
    nxt_w = NPRO; nxt_x = NPRO
    groups = [[2 * j, 2 * j + 1] for j in range(9)] + [[18]]
    order = [(tau, T) for T in range(NP1) for tau in range(20)]
    n_p1 = len(order)
    gstart = []
    for g in groups:
        gstart.append(len(order))
        order += [(tau, T) for T in range(NP1, NST) for tau in g]
    N = len(order)
    published = set()
    def publish(s):
        if s in published or s >= NST: return
        a.wait_vm([("w", s)])
        a("s_barrier"); published.add(s)
    def reads(n):
        if n >= N: return []
        tau, T = order[n]
        publish(T)
        return frag_read_ins(n, tau, T)
    publish(0)
    for n in range(LA):
        for r in reads(n): a.lds(r, ("f", n))
    bg = []
    def filler(k=1):
        for _ in range(k):
            if not bg: return
            ins = bg.pop(0)
            if isinstance(ins, str) and ins.startswith("STORE "): a.vmem(ins[6:], ("st",))
            else: put(a, ins)
    quota = 0.0
    setid = 0
    xwaited = set()
    for n, (tau, T) in enumerate(order):
        p1 = n < n_p1
        if p1 and tau == 0:
            if T in (9,): stamp(a, 2)
            publish(T + 1)
            assert not bg, bg
            for rep in range(ISSUE[T]):
                assert nxt_x <= T + PX and nxt_w <= T + PW
                bg += x_group(nxt_x); nxt_x += 1
                bg += dma_group(nxt_w); nxt_w += 1
            if T < 2:
                bg = [("VM", f"buffer_load_dword a{A_DUMMY}, v20, s[92:95], s99 offen", ("t", T)), f"s_add_u32 s99, s99, {3*294912}"] + bg
            elif T + TOUCH_AHEAD < NST:
                bg += [("VM", f"buffer_load_dword a{A_DUMMY}, v{V_TCH}, s[92:95], s98 offen", ("t", T)), "s_add_u32 s98, s98, 294912"]
            if T == 10: bg += ["s_lshr_b32 s55, s2, 3", "s_lshl_b32 s55, s55, 2", "s_add_u32 s55, s55, s52"] + touch_code_ins("k2_kernel", "k2_kernel_end", 128, 55, 16, 56, f"a{A_DUMMY+3}")
            dense = len(bg) > 19
        if not p1 and n in gstart:
            g = gstart.index(n)
            if g in (0, 1, 5): stamp(a, {0: 3, 1: 4, 5: 5}[g])
            if g >= 1:
                j = g - 1
                bg += epi_j_offset(j)
                for ip in range(2):
                    bg += epi_glu(j, ip, setid); setid ^= 1
            if 1 <= g <= 6: bg = wd_touch(g == 1) + bg
            nfr = len(groups[g]) * (NST - NP1)
            quota = len(bg) / (4.0 * nfr - 8); credit = -8 * quota
        if T not in xwaited:
            a.wait_vm([("x", T)]); xwaited.add(T)
        a.wait_lg([("f", n)])
        if p1 and tau == 19:
            a(f"s_cbranch_vccz K1_skip{T}")
            for i in range(4): mfma(a, n, tau, T, i)
            a.label(f"K1_skip{T}")
            for r in reads(n + LA): a.lds(r, ("f", n + LA))
            while bg: filler()
            continue
        rd = None
        for i in range(4):
            mfma(a, n, tau, T, i)
            if i == 0: rd = reads(n + LA)
            if i < len(rd): a.lds(rd[i], ("f", n + LA))
            if p1:
                if i == 1 and len(rd) < 2: filler()
                if i == 2: filler()
                if i == 3 and dense: filler()
            else:
                credit += quota
                while credit >= 1.0 and bg:
                    filler(); credit -= 1.0
        if not p1 and (n + 1 in gstart or n + 1 == N):
            while bg: filler()
    assert nxt_w == NST and nxt_x == NST
    a("s_nop 7")
    stamp(a, 6)
    for ins in epi_dft(0): emit(a, ins)
    a("s_cbranch_vccz K1_nob")
    nb = N
    seq = [(19, T) for T in range(NP1, NST)]
    for k, (tau, T) in enumerate(seq[:4]):
        for r in frag_read_ins(k, tau, T): a.lds(r, ("g", k))
    for k, (tau, T) in enumerate(seq):
        a.wait_lg([("g", k)])
        for i in range(4): mfma(a, k, tau, T, i)
        if k + 4 < len(seq):
            for r in frag_read_ins(k + 4, tau, seq[k + 4][1]): a.lds(r, ("g", k + 4))
    a("s_nop 7")
    for ins in epi_dft(1): emit(a, ins)
    a.label("K1_nob")
    stamps_out(a, 8, 1, 16, 16, s_wave=52)
    a.label("K1_exit")
    a("s_endpgm")
    return a

def spec():
    return dict(name="k1_kernel", asm=k1(), grid=256, block=256, lds=NR * STAGE, vgpr=512, accum=256, sgpr=102)
```

```python
from asmlib import Asm
from layout import *
from common import *
import p3

STAGE = 20480
HOFF = 12288
NR = 7
PW = 6
import os
PST = os.environ.get('PST', ' sc1')
EXP = os.environ.get('EXP', '')
NST = 36
LA = 3
NB = 5
V_TR, V_HB, V_DMA, V_P, V_T = 2, 20, 23, 28, 32
V_ACC, V_F, V_HF = 64, 160, 180
S_DST = 33; S_SW, S_SH = 28, 29; S_TMP = 43

def accr(j, i):
    b = V_ACC + 4 * (4 * j + i); return f"v[{b}:{b+3}]"
def hfrag(T, i):
    b = V_HF + 16 * (T % 2) + 4 * i; return f"v[{b}:{b+3}]"

def setup(a):
    a(f"""
    s_load_dwordx2 s[4:5], s[0:1], {K_WD}
    s_load_dwordx2 s[50:51], s[0:1], {K_WS}
    s_load_dwordx2 s[96:97], s[0:1], {K_X}
    v_and_b32 v1, 63, v0
    v_lshrrev_b32 v32, 6, v0
    s_and_b32 s55, s2, 7
    s_lshr_b32 s56, s2, 3
    v_readfirstlane_b32 s52, v32
    s_lshr_b32 s53, s55, 1
    s_and_b32 s54, s55, 1
    s_lshl_b32 s54, s54, 3
    s_and_b32 s57, s56, 7
    s_add_u32 s54, s54, s57
    s_lshr_b32 s57, s56, 3
    """)
    a(f"""
    s_mul_i32 s58, s53, {1152*1152}
    s_mul_i32 s59, s57, 384
    s_add_u32 s58, s58, s59
    s_mov_b32 s61, 0xaaaaaab
    """)
    for i in range(3):
        a(f"""
        s_add_u32 s56, s52, {4*i}
        s_lshl_b32 s{S_DST+i}, s56, 10
        s_lshl_b32 s56, s56, 6
        v_add_u32 v32, s56, v1
        v_mul_hi_u32 v33, v32, s61
        v_mul_u32_u24 v34, 24, v33
        v_sub_u32 v34, v32, v34
        v_bfe_u32 v35, v33, 1, 2
        v_lshlrev_b32 v35, 1, v35
        v_xor_b32 v34, v34, v35
        v_mul_u32_u24 v33, 1152, v33
        v_lshl_add_u32 v33, v34, 4, v33
        v_add_u32 v{V_DMA+i}, s58, v33
        """)
    a(f"""
    s_lshl_b32 s58, s54, 3
    s_add_u32 s58, s58, s52
    s_mul_i32 s58, s58, 144
    s_mul_i32 s59, s53, 36
    s_add_u32 s58, s58, s59
    s_lshl_b32 s58, s58, 10
    s_add_u32 s58, s58, {H}
    v_lshlrev_b32 v32, 4, v1
    v_add_u32 v{V_DMA+3}, s58, v32
    v_add_u32 v{V_DMA+4}, {4*147456}, v{V_DMA+3}
    s_add_u32 s56, s52, 12
    s_lshl_b32 s{S_DST+3}, s56, 10
    s_add_u32 s{S_DST+4}, s{S_DST+3}, 4096
    s_mov_b32 s{S_SW}, 0
    s_mov_b32 s{S_SH}, 0
    """)
    a(f"""
    s_lshr_b32 s58, s52, 1
    s_and_b32 s59, s52, 1
    s_mul_i32 s60, s59, 6
    v_lshrrev_b32 v32, 4, v1
    v_bfe_u32 v33, v1, 2, 2
    v_lshl_add_u32 v34, v32, 2, v33
    v_mul_u32_u24 v34, 384, v34
    v_and_b32 v35, 3, v1
    v_lshl_add_u32 v34, v35, 3, v34
    v_and_b32 v32, 1, v32
    v_lshrrev_b32 v33, 1, v33
    v_lshl_or_b32 v33, v32, 1, v33
    """)
    for j in range(6):
        a(f"""
        s_add_u32 s56, s60, {j}
        v_xor_b32 v35, s56, v33
        v_lshl_add_u32 v{V_TR+3*j}, v35, 5, v34
        v_add_u32 v{V_TR+3*j+1}, {3*STAGE}, v{V_TR+3*j}
        v_add_u32 v{V_TR+3*j+2}, {6*STAGE}, v{V_TR+3*j}
        """)
    a(f"""
    s_lshl_b32 s56, s58, 12
    s_add_u32 s56, s56, {HOFF}
    v_lshlrev_b32 v32, 4, v1
    v_add_u32 v{V_HB}, s56, v32
    v_add_u32 v{V_HB+1}, {3*STAGE}, v{V_HB}
    v_add_u32 v{V_HB+2}, {6*STAGE}, v{V_HB}
    """)
    a(f"""
    s_lshl_b32 s56, s53, 7
    s_lshl_b32 s59, s54, 3
    s_add_u32 s56, s56, s59
    s_lshl_b32 s59, s58, 2
    s_add_u32 s56, s56, s59
    s_mul_i32 s56, s56, 36
    s_mul_i32 s59, s57, 12
    s_add_u32 s56, s56, s59
    s_add_u32 s56, s56, s60
    s_lshl_b32 s56, s56, 9
    s_add_u32 s56, s56, {PART}
    v_lshlrev_b32 v32, 3, v1
    v_add_u32 v{V_P}, s56, v32
    s_waitcnt lgkmcnt(0)
    """)
    srd(a, 8, 4, SZ_G); srd(a, 16, 50, WS_END)

def dma_group(s):
    slot = s % NR; out = []
    for i in range(5):
        sr, so = (8, S_SW) if i < 3 else (16, S_SH)
        out.append(f"s_add_u32 m0, s{S_DST+i}, {slot*STAGE}")
        out.append(("VM", f"buffer_load_dwordx4 v{V_DMA+i}, s[{sr}:{sr+3}], s{so} offen lds", ("w", s)))
        if i == 2: out.append(f"s_add_u32 s{S_SW}, s{S_SW}, 36864")
    out.append(f"s_add_u32 s{S_SH}, s{S_SH}, 1024")
    return out
def put(a, ins, pad=False):
    if isinstance(ins, tuple):
        if " lds" in ins[1] and a.lines[-1].startswith("s_add_u32 m0"): a("s_nop 0")
        a.vmem(ins[1], ins[2])
    elif ins.startswith("LABEL "): a.label(ins[6:])
    else:
        a(ins)

def w_reads(n, j, T):
    fb = V_F + 4 * (n % NB); slot = T % NR; third, rem = slot // 3, (slot % 3) * STAGE
    return [f"ds_read_b64_tr_b16 v[{fb+2*rho}:{fb+2*rho+1}], v{V_TR+3*j+third} offset:{rem + rho*16*384}" for rho in range(2)]
def h_read(T, i):
    slot = T % NR; third, rem = slot // 3, (slot % 3) * STAGE
    return f"ds_read_b128 {hfrag(T, i)}, v{V_HB+third} offset:{rem + i*1024}"

def gemm2(a):
    stamp(a, 0)
    setup(a)
    stamp(a, 1)
    NPRO = 3
    for s in range(NPRO):
        for ins in dma_group(s): put(a, ins, pad=True)
    nxt = NPRO
    order = [(j, T) for T in range(NST) for j in range(6)]
    N = len(order)
    def publish(s):
        a.wait_vm([("w", s)])
        if "nobar" not in EXP or s < 2: a("s_barrier")
    publish(0)
    stamp(a, 2)
    for i in range(4): a.lds(h_read(0, i), ("h", 0))
    for n in range(LA):
        for r in w_reads(n, *order[n]): a.lds(r, ("f", n))
    bg = []
    def filler():
        if bg: put(a, bg.pop(0))
    for n, (j, T) in enumerate(order):
        if j == 0:
            if T in (4, 12, 24): stamp(a, {4: 3, 12: 4, 24: 5}[T])
            if T + 1 < NST: publish(T + 1)
            assert not bg
            for rep in range(2):
                if nxt < NST and nxt <= T + PW and (rep == 0 or T < 6):
                    if "nodma" not in EXP: bg += dma_group(nxt)
                    nxt += 1
            if 24 <= T < 28:
                if T == 24:
                    bg += ["s_lshr_b32 s55, s2, 3", "s_lshl_b32 s55, s55, 2", "s_add_u32 s55, s55, s52", "s_mul_i32 s55, s55, 54",
                           "v_mbcnt_lo_u32_b32 v36, -1, 0", "v_mbcnt_hi_u32_b32 v36, -1, v36", "v_add_u32 v37, s55, v36", "v_lshlrev_b32 v37, 7, v37",
                           f"v_add_u32 v37, {FI}, v37", "v_cmp_gt_u32 s[62:63], 14, v36", f"v_mov_b32 v36, {OOB}", "s_mov_b32 s60, 0", "s_nop 0",
                           "v_cndmask_b32 v37, v36, v37, s[62:63]"]
                bg += [("VM", "buffer_load_dword v38, v37, s[16:19], s60 offen", ("t", T)), f"s_add_u32 s60, s60, {14*128}"]
            if T == 28:
                bg += ["s_lshr_b32 s55, s2, 3", "s_lshl_b32 s55, s55, 2", "s_add_u32 s55, s55, s52", "s_mul_i32 s55, s55, 24",
                       "v_mbcnt_lo_u32_b32 v36, -1, 0", "v_mbcnt_hi_u32_b32 v36, -1, v36", "v_cmp_gt_u32 s[62:63], 24, v36", "v_add_u32 v36, s55, v36",
                       "s_mov_b32 s55, 0x1c71c71d", "v_mul_hi_u32 v37, v36, s55", "v_mul_u32_u24 v38, 9, v37", "v_sub_u32 v38, v36, v38",
                       "v_lshrrev_b32 v36, 5, v37", "v_and_b32 v37, 31, v37", "v_lshl_add_u32 v36, v37, 5, v36",
                       "s_and_b32 s55, s2, 7", "s_and_b32 s56, s55, 3", "s_lshl_b32 s56, s56, 3", "s_lshr_b32 s55, s55, 2", "s_lshl_b32 s55, s55, 10", "s_add_u32 s55, s55, s56",
                       "v_add_u32 v36, s55, v36", "v_mul_u32_u24 v36, 1152, v36", "v_lshl_add_u32 v36, v38, 7, v36",
                       f"v_mov_b32 v37, {OOB}", "s_mov_b32 s56, s96", "s_and_b32 s57, s97, 0xffff", f"s_mov_b32 s58, {SZ_X}", "s_mov_b32 s59, 0x20000",
                       "v_cndmask_b32 v36, v37, v36, s[62:63]",
                       ("VM", "buffer_load_dword v38, v36, s[56:59], 0 offen", ("t", T))]
            if T == 20: bg += ["s_lshr_b32 s55, s2, 3", "s_lshl_b32 s55, s55, 2", "s_add_u32 s55, s55, s52"] + touch_code_ins("k3_kernel", "k3_kernel_end", 96, 55, 32, 56, "v34")
            a.wait_lg([("h", T)])
        a.wait_lg([("f", n)])
        fb = V_F + 4 * (n % NB)
        rd = w_reads(n + LA, *order[n + LA]) if n + LA < N else []
        hr = [h_read(T + 1, j - 1)] if (1 <= j <= 4 and T + 1 < NST) else []
        for i in range(4):
            c = "0" if T == 0 else accr(j, i)
            a(f"v_mfma_f32_16x16x32_bf16 {accr(j, i)}, v[{fb}:{fb+3}], {hfrag(T, i)}, {c}")
            if i < 2 and rd: a.lds(rd[i], ("f", n + LA))
            elif i == 2 and hr: a.lds(hr[0], ("h", T + 1)); filler() if len(bg) > 12 else None
            else: filler()
            if i == 3: filler()
        if j == 5:
            while bg:
                ins = bg.pop(0); put(a, ins, pad=True)
    a("s_nop 7")
    stamp(a, 6)
    for j in range(6):
        for ip in range(2):
            T_ = V_T + 4 * ((2 * j + ip) % 4)
            for h in range(2):
                b = V_ACC + 4 * (4 * j + 2 * ip + h)
                a(f"v_cvt_pk_bf16_f32 v{T_+2*h}, v{b}, v{b+1}\nv_cvt_pk_bf16_f32 v{T_+2*h+1}, v{b+2}, v{b+3}")
            for h in range(2):
                a(f"s_mov_b32 s{S_TMP}, {(2*ip+h)*36*512 + j*512}")
                a.vmem(f"buffer_store_dwordx2 v[{T_+2*h}:{T_+2*h+1}], v{V_P}, s[16:19], s{S_TMP} offen{PST}", ("st",))
    stamps_out(a, 8, 2, 16, 32)
    a("s_endpgm")

def k2():
    a = Asm()
    a(f"""
    s_cmp_ge_u32 s2, {192+37}
    s_cbranch_scc1 K2_exit
    s_cmp_ge_u32 s2, 192
    s_cbranch_scc1 K2_p3
    """)
    gemm2(a)
    a.label("K2_p3")
    a.vm = []; a.lg = []
    p3.p3(a)
    a.label("K2_exit")
    a("s_endpgm")
    return a

def spec():
    return dict(name="k2_kernel", asm=k2(), grid=192 + 37, block=256, lds=NR * STAGE, vgpr=512, accum=256, sgpr=102)
```

```python
from asmlib import Asm
from layout import *
from common import *

import os
EXP3 = os.environ.get('EXP3', '')
NW = 6
V_L16, V_YP, V_PT, V_XO, V_YNA, V_RW, V_RR = 2, 3, 4, 5, 6, 7, 8
V_YN = 9
V_Y = 16
V_ACC = 40
V_PART = 112
V_X = 136
V_R = 144
V_OWN = 100
V_T = 16
def fi(T, jj):
    b = 4 * (9 * T + jj); return f"a[{b}:{b+3}]"
def yfrag(T, i):
    b = V_Y + 4 * (2 * T + i); return f"v[{b}:{b+3}]"
def accb(jj, i): return V_ACC + 4 * (2 * jj + i)

def k3():
    a = Asm()
    a("s_cmp_ge_u32 s2, 256\ns_cbranch_scc1 K3_exit")
    stamp(a, 0, 72)
    a(f"""
    s_load_dwordx2 s[50:51], s[0:1], {K_WS}
    s_load_dwordx2 s[4:5], s[0:1], {K_X}
    s_load_dwordx2 s[6:7], s[0:1], {K_OUT}
    v_and_b32 v1, 63, v0
    v_lshrrev_b32 v9, 6, v0
    s_and_b32 s55, s2, 7
    s_lshr_b32 s56, s2, 3
    v_readfirstlane_b32 s52, v9
    s_and_b32 s53, s56, 3
    s_lshr_b32 s54, s56, 2
    s_lshl_b32 s55, s55, 3
    s_add_u32 s54, s54, s55
    """)
    a(f"""
    v_lshlrev_b32 v{V_L16}, 4, v1
    s_mul_i32 s40, s53, {9*18*1024}
    s_mul_i32 s41, s52, {3*1024}
    s_add_u32 s40, s40, s41
    s_add_u32 s40, s40, {FI}
    v_and_b32 v9, 15, v1
    v_lshrrev_b32 v11, 4, v1
    v_lshlrev_b32 v12, 15, v11
    v_lshl_add_u32 v12, v9, 4, v12
    s_lshl_b32 s41, s54, 9
    s_mul_i32 s42, s52, {3*4*32768}
    s_add_u32 s41, s41, s42
    s_add_u32 s41, s41, {YP}
    v_add_u32 v{V_YP}, s41, v12
    s_mul_i32 s41, s52, {18*1024}
    v_add_u32 v{V_RW}, s41, v{V_L16}
    s_mul_i32 s41, s52, {3*1024}
    v_add_u32 v{V_RR}, s41, v{V_L16}
    """)
    for tt in range(3):
        a(f"""
        s_mul_i32 s41, s52, 3
        s_add_u32 s41, s41, {tt}
        s_lshr_b32 s42, s41, 1
        s_and_b32 s41, s41, 1
        s_mul_i32 s43, s41, {36*512}
        s_lshl_b32 s44, s42, 9
        s_add_u32 s{60+tt}, s43, s44
        s_mul_i32 s43, s41, {16*32*1152}
        s_lshl_b32 s44, s42, 5
        s_add_u32 s{63+tt}, s43, s44
        s_lshl_b32 s{66+tt}, s41, 6
        """)
    a(f"""
    s_mul_i32 s41, s54, {2*36*512}
    s_mul_i32 s42, s53, {9*512}
    s_add_u32 s41, s41, s42
    s_add_u32 s41, s41, {PART}
    v_lshlrev_b32 v12, 3, v1
    v_add_u32 v{V_PT}, s41, v12
    s_lshr_b32 s41, s54, 3
    s_and_b32 s42, s54, 7
    s_and_b32 s43, s41, 3
    s_lshl_b32 s43, s43, 3
    s_add_u32 s43, s43, s42
    s_lshr_b32 s41, s41, 2
    s_lshl_b32 s41, s41, 10
    s_add_u32 s43, s43, s41
    v_lshlrev_b32 v12, 5, v9
    v_add_u32 v12, s43, v12
    v_mul_u32_u24 v12, 1152, v12
    v_lshl_add_u32 v12, v11, 3, v12
    s_mul_i32 s41, s53, 288
    v_add_u32 v{V_XO}, s41, v12
    s_lshl_b32 s41, s54, 7
    s_add_u32 s41, s41, {YN}
    v_lshlrev_b32 v12, 2, v9
    v_add_u32 v{V_YNA}, s41, v12
    s_mov_b32 s27, 0xffff0000
    s_mov_b32 s44, 0x35638e39
    s_mov_b32 s45, 0xbfb8aa3b
    s_waitcnt lgkmcnt(0)
    """)
    srd(a, 16, 50, WS_END); srd(a, 8, 4, SZ_X); srd(a, 12, 6, SZ_X)
    def loads(T):
        for i in range(2):
            a(f"s_mov_b32 s46, {T*4*32768 + i*256}")
            a.vmem(f"buffer_load_dwordx4 {yfrag(T, i)}, v{V_YP}, s[16:19], s46 offen", ("k", T))
        for jj in range(9):
            a(f"s_add_u32 s46, s40, {jj*18*1024 + T*1024}")
            a.vmem(f"buffer_load_dwordx4 {fi(T, jj)}, v{V_L16}, s[16:19], s46 offen", ("k", T))
    stamp(a, 6, 72) if False else None
    def side():
      for tt in range(3):
        for ks in range(4 if "nopart" not in EXP3 else 0):
            a(f"s_add_u32 s46, s{60+tt}, {ks*128*36*512}")
            b = V_PART + 2 * (3 * ks + tt)
            a.vmem(f"buffer_load_dwordx2 v[{b}:{b+1}], v{V_PT}, s[16:19], s46 offen", "p")
        if "nox" not in EXP3: a.vmem(f"buffer_load_dwordx2 v[{V_X+2*tt}:{V_X+2*tt+1}], v{V_XO}, s[8:11], s{63+tt} offen", "p")
        a.vmem(f"buffer_load_dword v{V_YN+tt}, v{V_YNA}, s[16:19], s{66+tt} offen", "p")
    if "sidefirst" in EXP3: side()
    if "yfirst" in EXP3:
        for T in range(3):
            for i in range(2):
                a(f"s_mov_b32 s46, {T*4*32768 + i*256}")
                a.vmem(f"buffer_load_dwordx4 {yfrag(T, i)}, v{V_YP}, s[16:19], s46 offen", ("k", T))
        side()
        for T in range(3):
            for jj in range(9):
                a(f"s_add_u32 s46, s40, {jj*18*1024 + T*1024}")
                a.vmem(f"buffer_load_dwordx4 {fi(T, jj)}, v{V_L16}, s[16:19], s46 offen", ("k", T))
    else:
        for T in range(3): loads(T)
        if "sidefirst" not in EXP3 and "noside" not in EXP3: side()
    stamp(a, 1, 72)
    for T in range(3):
        a.wait_vm([("k", T)])
        for jj in range(9):
            for i in range(2):
                b = accb(jj, i); c = "0" if T == 0 else f"v[{b}:{b+3}]"
                a(f"v_mfma_f32_16x16x32_bf16 v[{b}:{b+3}], {fi(T, jj)}, {yfrag(T, i)}, {c}")
    a("s_nop 7")
    stamp(a, 2, 72)
    for w in range(NW):
        if w < NW - 1: a(f"s_cmp_lg_u32 s52, {w}\ns_cbranch_scc1 K3_w{w+1}")
        for t in list(range(3 * w, 3 * w + 3)) + [t for t in range(18) if t // 3 != w]:
            b = V_ACC + 4 * t
            if t // 3 == w: continue
            a(f"ds_write_b128 v{V_RW}, v[{b}:{b+3}] offset:{t*1024}")
        a("s_waitcnt lgkmcnt(0)")
        for tt in range(3):
            dst = V_OWN + 4 * tt
            for r in range(4): a(f"v_mov_b32 v{dst+r}, v{V_ACC+4*(3*w+tt)+r}")
        if w < NW - 1: a(f"s_branch K3_red\nK3_w{w+1}:")
    a.label("K3_red")
    stamp(a, 4, 72)
    T_ = V_T
    a("s_waitcnt vmcnt(0)"); a.vm = []
    for tt in range(3):
        V = T_ + 4 * tt
        for h in range(2):
            for ks in range(4):
                p = V_PART + 2 * (3 * ks + tt) + h
                if ks == 0: a(f"v_lshlrev_b32 v{V+2*h}, 16, v{p}\nv_and_b32 v{V+2*h+1}, s27, v{p}")
                else:
                    a(f"v_lshlrev_b32 v14, 16, v{p}\nv_and_b32 v15, s27, v{p}")
                    a(f"v_add_f32 v{V+2*h}, v{V+2*h}, v14\nv_add_f32 v{V+2*h+1}, v{V+2*h+1}, v15")
    E = T_ + 12
    for k in range(12): a(f"v_mul_f32 v{E+k}, s45, v{T_+k}")
    for k in range(12): a(f"v_exp_f32 v{E+k}, v{E+k}")
    for k in range(12): a(f"v_add_f32 v{E+k}, 1.0, v{E+k}")
    for k in range(12): a(f"v_rcp_f32 v{E+k}, v{E+k}")
    for k in range(12): a(f"v_mul_f32 v{E+k}, v{E+k}, v{T_+k}")
    a("s_waitcnt lgkmcnt(0)\ns_barrier")
    stamp(a, 3, 72)
    R = V_ACC
    for k in range(1, 6):
        a(f"""
        s_add_u32 s41, s52, {k}
        s_sub_u32 s42, s41, 6
        s_cmp_ge_u32 s41, 6
        s_cselect_b32 s41, s42, s41
        s_mul_i32 s41, s41, {18*1024}
        v_add_u32 v12, s41, v{V_RR}
        """)
        for tt in range(3):
            a(f"ds_read_b128 v[{R+4*(5*tt+k-1)}:{R+4*(5*tt+k-1)+3}], v12 offset:{tt*1024}")
    a("s_waitcnt lgkmcnt(0)")
    for tt in range(3):
        A = R + 20 * tt; O = V_OWN + 4 * tt
        for r in range(4):
            a(f"v_add_f32 v{A+r}, v{A+r}, v{A+4+r}\nv_add_f32 v{A+8+r}, v{A+8+r}, v{A+12+r}\nv_add_f32 v{A+16+r}, v{A+16+r}, v{O+r}")
        for r in range(4):
            a(f"v_add_f32 v{A+r}, v{A+r}, v{A+8+r}")
            a(f"v_{'add' if r % 2 == 0 else 'sub'}_f32 v{A+16+r}, v{A+16+r}, v{V_YN+tt}")
        for r in range(4): a(f"v_add_f32 v{A+r}, v{A+r}, v{A+16+r}")
        for r in range(4): a(f"v_mul_f32 v{A+r}, s44, v{A+r}")
        for r in range(4): a(f"v_mul_f32 v{A+r}, v{A+r}, v{E+4*tt+r}")
        for h in range(2):
            x = V_X + 2 * tt + h
            a(f"v_lshlrev_b32 v{A+4+2*h}, 16, v{x}\nv_and_b32 v{A+5+2*h}, s27, v{x}")
        for r in range(4): a(f"v_add_f32 v{A+r}, v{A+r}, v{A+4+r}")
        o = V_X + 2 * tt
        a(f"v_cvt_pk_bf16_f32 v{o}, v{A}, v{A+1}\nv_cvt_pk_bf16_f32 v{o+1}, v{A+2}, v{A+3}")
        a(f"buffer_store_dwordx2 v[{o}:{o+1}], v{V_XO}, s[12:15], s{63+tt} offen")
    stamp(a, 5, 72)
    stamps_out(a, 7, 4, 16, 12, base=72, s_wave=52)
    a.label("K3_exit")
    a("s_endpgm")
    return a

def spec():
    return dict(name="k3_kernel", asm=k3(), grid=256, block=384, lds=6 * 18 * 1024, vgpr=252, accum=144, sgpr=102)
```

```python
from layout import *
from common import *

L_F64A, L_F64, L_F32, L_TW1, L_TW2 = 0, 24*1024, 48*1024, 54*1024, 70*1024
L_X = 86 * 1024
V_L16, V_L16B, V_XW, V_XR, V_OUT, V_YN = 2, 3, 6, 7, 8, 9
V_W = 16
V_D = 48
V_TW = 112
V_P = 176
V_E = 208
V_T = 240
A_F64A, A_F64, A_F32, A_Y = 0, 96, 192, 216

def D(jt, im): return V_D + 32 * jt + 16 * im
def TW(jt, s): return V_TW + 32 * jt + 16 * s
def P(jt, im): return V_P + 16 * jt + 8 * im
def E(jt, im): return V_E + 16 * jt + 8 * im
def c64a(kind, jt, t): return f"a[{A_F64A+4*((kind*2+jt)*4+t)}:{A_F64A+4*((kind*2+jt)*4+t)+3}]"
def c64(kind, b, t): return f"a[{A_F64+4*((kind*2+b)*4+t)}:{A_F64+4*((kind*2+b)*4+t)+3}]"
def c32(kind, u): return f"a[{A_F32+4*(kind*2+u)}:{A_F32+4*(kind*2+u)+3}]"
def yf(im, t): return f"a[{A_Y+16*im+4*t}:{A_Y+16*im+4*t+3}]"
def vf(b): return f"v[{b}:{b+3}]"
def mf(d, x, y, first):
    return f"v_mfma_f32_32x32x16_bf16 v[{d}:{d+15}], {x}, {y}, {'0' if first else f'v[{d}:{d+15}]'}"

def S1(jt):
    o = []
    for t in range(4):
        o += [mf(D(jt,0), yf(0,t), c64a(0,jt,t), t == 0), mf(D(jt,1), yf(1,t), c64a(0,jt,t), t == 0),
              mf(D(jt,0), yf(1,t), c64a(1,jt,t), False), mf(D(jt,1), yf(0,t), c64a(2,jt,t), False)]
    return o
def S2(jt):
    o = []
    for u in range(2):
        o += [mf(D(jt,0), c32(0,u), vf(P(jt,0)+4*u), u == 0), mf(D(jt,1), c32(0,u), vf(P(jt,1)+4*u), u == 0),
              mf(D(jt,0), c32(1,u), vf(P(jt,1)+4*u), False), mf(D(jt,1), c32(2,u), vf(P(jt,0)+4*u), False)]
    return o
def S3(jt):
    o = []
    for u in range(2):
        o += [mf(D(jt,0), vf(P(jt,0)+4*u), c32(0,u), u == 0), mf(D(jt,1), vf(P(jt,1)+4*u), c32(0,u), u == 0),
              mf(D(jt,0), vf(P(jt,1)+4*u), c32(2,u), False), mf(D(jt,1), vf(P(jt,0)+4*u), c32(1,u), False)]
    return o
def S4(b):
    o = []
    for t in range(4):
        ar = vf(E(t // 2, 0) + 4 * (t % 2)); ai = vf(E(t // 2, 1) + 4 * (t % 2))
        o += [mf(D(b,0), ar, c64(0,b,t), t == 0), mf(D(b,1), ai, c64(0,b,t), t == 0),
              mf(D(b,0), ai, c64(2,b,t), False), mf(D(b,1), ar, c64(1,b,t), False)]
    return o
def cmul(jt, sign):
    o = []; dr, di, tc, ts = D(jt,0), D(jt,1), TW(jt,0), TW(jt,1)
    for r0 in range(0, 16, 4):
        for r in range(r0, r0 + 4):
            t = V_T + 2 * (r % 4)
            o += [f"v_mul_f32 v{t}, v{di+r}, v{ts+r}", f"v_mul_f32 v{t+1}, v{dr+r}, v{ts+r}"]
        for r in range(r0, r0 + 4):
            t = V_T + 2 * (r % 4)
            if sign > 0: o += [f"v_fma_f32 v{dr+r}, v{dr+r}, v{tc+r}, -v{t}", f"v_fma_f32 v{di+r}, v{di+r}, v{tc+r}, v{t+1}"]
            else:        o += [f"v_fma_f32 v{dr+r}, v{dr+r}, v{tc+r}, v{t}", f"v_fma_f32 v{di+r}, v{di+r}, v{tc+r}, -v{t+1}"]
    return o
def pack(jt, pr, pi):
    o = []
    for i in range(8):
        o += [f"v_cvt_pk_bf16_f32 v{pr+i}, v{D(jt,0)+2*i}, v{D(jt,0)+2*i+1}", f"v_cvt_pk_bf16_f32 v{pi+i}, v{D(jt,1)+2*i}, v{D(jt,1)+2*i+1}"]
    return o
def wmul(jt):
    o = []; dr, di = D(jt,0), D(jt,1)
    for r8 in range(2):
        for i in range(4):
            wr = V_W + ((jt*2+0)*2+r8)*4 + i; wi = V_W + ((jt*2+1)*2+r8)*4 + i
            t = V_T + 8
            o += [f"v_lshlrev_b32 v{t}, 16, v{wr}", f"v_lshlrev_b32 v{t+1}, 16, v{wi}", f"v_and_b32 v{t+2}, s27, v{wr}", f"v_and_b32 v{t+3}, s27, v{wi}"]
            for h in range(2):
                r = 8*r8 + 2*i + h
                o += [f"v_mul_f32 v{t+4+2*h}, v{di+r}, v{t+1+2*h}", f"v_mul_f32 v{t+5+2*h}, v{dr+r}, v{t+1+2*h}"]
            for h in range(2):
                r = 8*r8 + 2*i + h
                o += [f"v_fma_f32 v{dr+r}, v{dr+r}, v{t+2*h}, -v{t+4+2*h}", f"v_fma_f32 v{di+r}, v{di+r}, v{t+2*h}, v{t+5+2*h}"]
    return o
def tw_reads(base, jt):
    o = []
    for cs in range(2):
        for q in range(4):
            off = base + ((jt*2+cs)*4+q)*1024
            b, oo = (V_L16, off) if off < 65536 else (V_L16B, off - 65536)
            o.append(f"ds_read_b128 v[{TW(jt,cs)+4*q}:{TW(jt,cs)+4*q+3}], v{b} offset:{oo}")
    return o
def merge(a, M, V, lead=2, tail_nop=True):
    n = len(M); k = 0
    slots = max(n - lead, 1)
    for i, m in enumerate(M):
        a(m)
        if i == lead - 1 and V: a("s_nop 9")
        if i >= lead - 1:
            upto = len(V) * (i - lead + 2) // (slots + 1) if i < n - 1 else len(V)
            while k < min(upto, len(V)):
                a(V[k]); k += 1
    while k < len(V): a(V[k]); k += 1

def out_write(b):
    o = []
    for r in range(16):
        t = V_T + r % 4
        o += [f"v_cvt_pk_bf16_f32 v{t}, v{D(b,0)+r}, v{D(b,1)+r}", f"ds_write_b32 v{V_XW}, v{t} offset:{b*16384 + (8*(r//4)+r%4)*512}"]
    return o

def data_loads_y(a):
    for t in range(4): a(f"buffer_load_dwordx4 {yf(0,t)}, v{V_L16}, s[16:19], s48 offen offset:{t*1024}")
    a("s_cmp_eq_u32 s47, 1\ns_cbranch_scc1 P3_zero@")
    for t in range(4): a(f"buffer_load_dwordx4 {yf(1,t)}, v{V_L16}, s[16:19], s49 offen offset:{t*1024}")
    a("s_branch P3_go@\nP3_zero@:")
    for r in range(16): a(f"v_accvgpr_write_b32 a{A_Y+16+r}, 0")
    a("P3_go@:")
def data_loads_w(a):
    for f in range(8):
        a(f"s_add_u32 s45, s43, {(f//4)*4096}")
        a(f"buffer_load_dwordx4 v[{V_W+4*f}:{V_W+4*f+3}], v{V_L16}, s[16:19], s45 offen offset:{(f%4)*1024}")
def col_addr(a, pas):
    a(f"""
    s_lshl_b32 s44, s40, 3
    s_add_u32 s44, s44, {4*pas}
    s_add_u32 s44, s44, s52
    s_min_u32 s42, s44, 288
    s_lshl_b32 s43, s42, 13
    s_add_u32 s43, s43, {WT}
    s_lshl_b32 s48, s42, 13
    s_mov_b32 s47, 0
    s_cmp_eq_u32 s42, 288
    s_cselect_b32 s48, 4096, s48
    s_cselect_b32 s47, 1, s47
    s_cmp_eq_u32 s42, 0
    s_cselect_b32 s47, 1, s47
    s_add_u32 s48, s48, {YT}
    s_add_u32 s49, s48, 4096
    """)
class Sub:
    def __init__(self, a, uid): self.a, self.uid = a, uid
    def __call__(self, s): self.a(s.replace("@", self.uid))

def column(a, pas):
    u = Sub(a, f"_{pas}")
    for r in tw_reads(L_TW1, 0) + tw_reads(L_TW1, 1): a(r)
    a("s_waitcnt vmcnt(0)" if pas == 0 else "s_waitcnt vmcnt(8)")
    merge(a, S1(0), [])
    a("s_waitcnt lgkmcnt(0)")
    merge(a, S1(1), cmul(0, -1) + pack(0, P(0,0), P(0,1)))
    if pas == 0:
        col_addr(a, 1)
        a("s_cmp_gt_u32 s44, 288\ns_cbranch_scc1 P3_nonexty")
        data_loads_y(Sub(a, "_b"))
        a.label("P3_nonexty")
    a("s_nop 1")
    merge(a, S2(0), cmul(1, -1) + pack(1, P(1,0), P(1,1)) + tw_reads(L_TW2, 0))
    a("s_nop 1")
    merge(a, S2(1), wmul(0) + pack(0, P(0,0), P(0,1)) + tw_reads(L_TW2, 1))
    a("s_nop 1")
    merge(a, S3(0), wmul(1) + pack(1, P(1,0), P(1,1)))
    if pas == 0:
        a("s_cmp_gt_u32 s44, 288\ns_cbranch_scc1 P3_nonextw")
        data_loads_w(a)
        a.label("P3_nonextw")
    a("s_waitcnt lgkmcnt(0)")
    a("s_nop 1")
    merge(a, S3(1), cmul(0, +1) + pack(0, E(0,0), E(0,1)))
    a("s_nop 11")
    for v in cmul(1, +1) + pack(1, E(1,0), E(1,1)): a(v)
    a("s_nop 1")
    merge(a, S4(0), [])
    a(f"s_cmp_eq_u32 s46, 288\ns_cbranch_scc1 P3_nyq_{pas}")
    merge(a, S4(1), out_write(0))
    a("s_nop 11")
    for v in out_write(1): a(v)
    a(f"s_branch P3_nyqend_{pas}")
    a.label(f"P3_nyq_{pas}")
    for m in S4(1): a(m)
    a("s_nop 11")
    for b in range(2):
        for r in range(16):
            a(f"s_mov_b32 s45, {(b*1024 + 32*(8*(r//4)+r%4))*4}")
            a(f"buffer_store_dword v{D(b,0)+r}, v{V_YN}, s[16:19], s45 offen")
    a.label(f"P3_nyqend_{pas}")

def p3(a):
    stamp(a, 0)
    a(f"""
    s_load_dwordx2 s[50:51], s[0:1], {K_WS}
    v_and_b32 v1, 63, v0
    v_lshrrev_b32 v10, 6, v0
    s_sub_u32 s40, s2, 192
    v_lshlrev_b32 v{V_L16}, 4, v1
    v_readfirstlane_b32 s52, v10
    v_add_u32 v{V_L16B}, 0x10000, v{V_L16}
    s_mov_b32 s27, 0xffff0000
    v_lshlrev_b32 v11, 4, v0
    v_add_u32 v12, {TAB}, v11
    v_add_u32 v{V_XR}, {L_X}, v11
    v_lshlrev_b32 v{V_OUT}, 4, v0
    v_and_b32 v13, 31, v1
    v_lshrrev_b32 v14, 5, v1
    v_lshlrev_b32 v15, 4, v13
    v_lshl_add_u32 v15, v14, 11, v15
    s_lshl_b32 s41, s52, 2
    s_add_u32 s41, s41, {L_X}
    v_add_u32 v{V_XW}, s41, v15
    v_lshlrev_b32 v15, 2, v13
    v_lshl_add_u32 v15, v14, 9, v15
    v_add_u32 v{V_YN}, {YN}, v15
    """)
    col_addr(a, 0)
    a("s_waitcnt lgkmcnt(0)")
    srd(a, 16, 50, WS_END)
    a("s_lshl_b32 s42, s52, 10")
    for g in range(22):
        n = min(4, 86 - 4 * g)
        if n < 4: a(f"s_cmp_ge_u32 s52, {n}\ns_cbranch_scc1 P3_tabdone")
        a(f"s_add_u32 m0, s42, {g*4096}\ns_mov_b32 s45, {g*4096}")
        a("buffer_load_dwordx4 v12, s[16:19], s45 offen lds")
    a.label("P3_tabdone")
    data_loads_y(Sub(a, "_a")); data_loads_w(a)
    a("s_waitcnt vmcnt(8)\ns_barrier")
    for f in range(54):
        off = f * 1024
        a(f"ds_read_b128 a[{4*f}:{4*f+3}], v{V_L16} offset:{off}")
        if f % 12 == 11: a("s_waitcnt lgkmcnt(4)")
    a("s_waitcnt lgkmcnt(0)")
    stamp(a, 1)
    for pas in range(2):
        a(f"s_mov_b32 s46, s44\ns_cmp_gt_u32 s46, 288\ns_cbranch_scc1 P3_nocol_{pas}")
        column(a, pas)
        a.label(f"P3_nocol_{pas}")
        if pas == 0: a("s_lshl_b32 s44, s40, 3\ns_add_u32 s44, s44, 4\ns_add_u32 s44, s44, s52")
        a("s_waitcnt lgkmcnt(0)\ns_barrier")
        a(f"""
        s_lshl_b32 s45, s40, 1
        s_add_u32 s45, s45, {pas}
        s_cmp_ge_u32 s45, 72
        s_cbranch_scc1 P3_noflush_{pas}
        s_lshl_b32 s45, s45, 15
        s_add_u32 s41, s45, {YP}
        """)
        for i in range(8): a(f"ds_read_b128 v[{V_D+4*i}:{V_D+4*i+3}], v{V_XR} offset:{i*4096}")
        a("s_waitcnt lgkmcnt(0)")
        for i in range(8):
            a(f"s_add_u32 s45, s41, {i*4096}")
            a(f"buffer_store_dwordx4 v[{V_D+4*i}:{V_D+4*i+3}], v{V_OUT}, s[16:19], s45 offen sc1")
        a.label(f"P3_noflush_{pas}")
        if pas == 0:
            a("s_barrier")
            stamp(a, 2)
    stamps_out(a, 4, 3, 16, 10)
    a("s_endpgm")
```

```python
from asmlib import Asm
from layout import *
from common import *
import os

STAGE = 20480
UPOFF = 9216
FFOFF = 18432
NR = 7
PW = 6
PX = 6
NXS = 7
NP1 = 12
LA = 3
NB = 5
import os
HST = os.environ.get('HST', '')
NST = 18
V_TR, V_FFB, V_DMA, V_X, V_H, V_Y, V_T = 2, 5, 8, 13, 14, 15, 16
V_TCH = 1
A_DUMMY = 228
TOUCH_AHEAD = 7
ISSUE = [int(c) for c in os.environ.get('ISSUE', '111212121211')]
V_WDT = 0
A_X, A_F = 96, 208

def acc(tau, i):
    blk = 4 * tau + i
    return ("v", 32 + 4 * blk) if blk < 56 else ("a", 4 * (blk - 56))
def accr(tau, i):
    f, b = acc(tau, i); return f"{f}[{b}:{b+3}]"
def xfrag(T, i):
    b = A_X + (T % NXS) * 16 + 4 * i; return f"a[{b}:{b+3}]"

S_SRD = {0: 8, 1: 8, 2: 20, 3: 12, 4: 24}
S_SRCW, S_SRC4 = 28, 29
S_DST = 33
S_INC4 = 38
S_X = 39
S_TMP = 43
S_K = 44
S_FG = 48
S_FT, S_MT, S_W = 53, 54, 52

def setup(a):
    a(f"""
    s_cmp_ge_u32 s2, 256
    s_cbranch_scc1 K1_exit
    s_load_dwordx2 s[4:5], s[0:1], {K_WG}
    s_load_dwordx2 s[6:7], s[0:1], {K_WU}
    s_load_dwordx2 s[50:51], s[0:1], {K_WS}
    v_and_b32 v1, 63, v0
    v_lshrrev_b32 v16, 6, v0
    s_and_b32 s55, s2, 7
    s_lshr_b32 s56, s2, 3
    v_readfirstlane_b32 s52, v16
    s_lshr_b32 s53, s55, 1
    s_lshl_b32 s53, s53, 3
    s_and_b32 s54, s56, 7
    s_add_u32 s53, s53, s54
    s_and_b32 s54, s55, 1
    s_lshl_b32 s54, s54, 2
    s_lshr_b32 s55, s56, 3
    s_add_u32 s54, s54, s55
    """)
    a(f"""
    s_lshl_b32 s55, s54, 4
    s_lshl_b32 s56, s52, 2
    s_add_u32 s55, s55, s56
    s_mul_i32 s56, s55, 18432
    s_add_u32 s56, s56, {XN}
    v_lshlrev_b32 v16, 4, v1
    v_add_u32 v{V_X}, s56, v16
    s_mul_i32 s56, s55, 147456
    s_add_u32 s56, s56, {H}
    v_add_u32 v{V_H}, s56, v16
    s_mov_b32 s{S_X}, 0
    s_mov_b32 s{S_X+1}, 18432
    s_mov_b32 s{S_X+2}, 36864
    s_mov_b32 s{S_X+3}, 55296
    s_mul_i32 s{S_FG}, s53, 9
    """)
    a("s_mul_i32 s55, s53, 288\ns_mov_b32 s61, 0xe38e38f")
    for i in range(5):
        a(f"""
        s_add_u32 s56, s52, {4*i}
        s_sub_u32 s57, s56, 9
        s_cmp_lt_u32 s56, 9
        s_cselect_b32 s58, s56, s57
        s_cselect_b32 s59, 0, {UPOFF}
        s_lshl_b32 s60, s58, 10
        s_add_u32 s{S_DST+i}, s60, s59
        s_lshl_b32 s58, s58, 6
        v_add_u32 v16, s58, v1
        v_mul_hi_u32 v17, v16, s61
        v_mul_u32_u24 v18, 18, v17
        v_sub_u32 v18, v16, v18
        v_and_b32 v19, 0x13, v17
        v_bfe_u32 v20, v17, 2, 1
        v_lshl_or_b32 v19, v20, 3, v19
        v_bfe_u32 v20, v17, 3, 1
        v_lshl_or_b32 v19, v20, 2, v19
        v_mul_u32_u24 v19, 9216, v19
        v_lshl_add_u32 v19, v18, 4, v19
        v_add_u32 v{V_DMA+i}, s55, v19
        """)
    a(f"""
    s_cmp_lt_u32 s52, 2
    s_cbranch_scc1 K1_noff
    s_add_u32 s56, s53, 32
    s_cmp_lt_u32 s53, 4
    s_cselect_b32 s56, s56, s53
    s_cmp_eq_u32 s52, 2
    s_cselect_b32 s56, s53, s56
    s_mul_i32 s56, s56, 18432
    s_add_u32 s56, s56, {FF}
    v_lshlrev_b32 v16, 4, v1
    v_add_u32 v{V_DMA+4}, s56, v16
    s_sub_u32 s56, s52, 2
    s_lshl_b32 s56, s56, 10
    s_add_u32 s{S_DST+4}, s56, {FFOFF}
    """)
    a.label("K1_noff")
    a(f"""
    v_and_b32 v16, 15, v1
    s_lshl_b32 s55, s53, 4
    v_add_u32 v17, s55, v16
    v_lshlrev_b32 v17, 12, v17
    v_lshrrev_b32 v18, 5, v1
    v_lshl_add_u32 v17, v18, 10, v17
    v_bfe_u32 v18, v1, 4, 1
    v_lshlrev_b32 v18, 5, v18
    s_and_b32 s56, s54, 3
    s_lshl_b32 s56, s56, 3
    s_lshl_b32 s57, s52, 1
    s_add_u32 s56, s56, s57
    v_add_u32 v18, s56, v18
    v_lshl_add_u32 v17, v18, 4, v17
    s_lshr_b32 s56, s54, 2
    s_lshl_b32 s56, s56, 11
    s_add_u32 s56, s56, {YT}
    v_add_u32 v{V_Y}, s56, v17
    """)
    a(f"""
    v_lshrrev_b32 v16, 5, v1
    v_lshlrev_b32 v16, 4, v16
    v_bfe_u32 v17, v1, 4, 1
    v_lshl_add_u32 v16, v17, 2, v16
    v_bfe_u32 v17, v1, 2, 2
    v_add_u32 v16, v16, v17
    v_mul_u32_u24 v16, 288, v16
    v_and_b32 v18, 3, v1
    v_lshl_add_u32 v{V_TR}, v18, 3, v16
    v_add_u32 v{V_TR+1}, {3*STAGE}, v{V_TR}
    v_add_u32 v{V_TR+2}, {6*STAGE}, v{V_TR}
    v_lshlrev_b32 v{V_FFB}, 4, v1
    v_add_u32 v{V_FFB+1}, {3*STAGE}, v{V_FFB}
    v_add_u32 v{V_FFB+2}, {6*STAGE}, v{V_FFB}
    s_mov_b32 s{S_K}, 0xbfb8aa3b
    s_mov_b32 s{S_K+1}, 0xbfb8aa3b
    s_mov_b32 s{S_K+2}, 1.0
    s_mov_b32 s{S_K+3}, 1.0
    s_mov_b32 s{S_SRCW}, 0
    s_mov_b32 s{S_SRC4}, 0
    s_mov_b32 s{S_INC4}, 1024
    s_cmp_lt_u32 s52, 2
    s_cselect_b32 s{S_INC4}, 294912, s{S_INC4}
    s_cmp_lt_u32 s53, 4
    s_cselect_b64 vcc, -1, 0
    """)
    a(f"""
    s_mov_b32 s55, 0x1c71c71d
    v_mul_hi_u32 v16, v1, s55
    v_mul_u32_u24 v17, 9, v16
    v_sub_u32 v17, v1, v17
    s_and_b32 s55, s52, 1
    s_mul_i32 s55, s55, 9
    v_add_u32 v17, s55, v17
    v_lshlrev_b32 v17, 7, v17
    s_lshr_b32 s55, s2, 3
    s_mul_i32 s55, s55, 9216
    s_and_b32 s56, s2, 7
    s_lshr_b32 s56, s56, 1
    s_mul_i32 s56, s56, 2304
    s_add_u32 s55, s55, s56
    v_add_u32 v17, s55, v17
    s_mov_b32 s55, 294912
    v_mul_lo_u32 v18, v16, s55
    v_add_u32 v18, v17, v18
    v_mov_b32 v19, {OOB}
    v_cmp_gt_u32 s[62:63], 27, v1
    v_cmp_gt_u32 s[98:99], 9, v1
    s_load_dwordx2 s[96:97], s[0:1], {K_WD}
    s_nop 0
    v_cndmask_b32 v20, v19, v18, s[62:63]
    v_cndmask_b32 v{V_TCH}, v19, v17, s[98:99]
    s_mov_b32 s98, {(TOUCH_AHEAD+2)*294912}
    s_mov_b32 s99, {3*294912}
    s_lshr_b32 s55, s2, 3
    s_lshl_b32 s55, s55, 2
    s_add_u32 s55, s55, s52
    s_mul_i32 s55, s55, 81
    v_mbcnt_lo_u32_b32 v16, -1, 0
    v_mbcnt_hi_u32_b32 v16, -1, v16
    v_add_u32 v17, s55, v16
    v_lshlrev_b32 v17, 7, v17
    s_and_b32 s55, s2, 7
    s_lshr_b32 s55, s55, 1
    s_mul_i32 s55, s55, {1152*1152}
    v_add_u32 v17, s55, v17
    v_cmp_gt_u32 s[62:63], 14, v16
    s_mov_b32 s100, 0
    s_waitcnt lgkmcnt(0)
    v_cndmask_b32 v{V_WDT}, v19, v17, s[62:63]
    """)
    srd(a, 16, 50, WS_END); srd(a, 8, 4, SZ_G); srd(a, 12, 6, SZ_G)
    a("s_cmp_lt_u32 s52, 2")
    for i in range(3): a(f"s_cselect_b32 s{92+i}, s{8+i}, s{12+i}")
    a("s_mov_b32 s95, 0x20000")
    a("s_cmp_eq_u32 s52, 0")
    for i in range(3): a(f"s_cselect_b32 s{20+i}, s{8+i}, s{12+i}")
    a("s_cmp_lt_u32 s52, 2")
    for i in range(3): a(f"s_cselect_b32 s{24+i}, s{12+i}, s{16+i}")
    a("s_mov_b32 s23, 0x20000\ns_mov_b32 s27, 0x20000")

def dma_ins(s, i):
    slot = s % NR; sr = S_SRD[i]; so = S_SRC4 if i == 4 else S_SRCW
    out = [f"s_add_u32 m0, s{S_DST+i}, {slot*STAGE}",
           ("VM", f"buffer_load_dwordx4 v{V_DMA+i}, s[{sr}:{sr+3}], s{so} offen lds", ("w", s))]
    if i == 3: out.append(f"s_add_u32 s{S_SRCW}, s{S_SRCW}, 294912") if False else None
    return out
def dma_group(s):
    out = []
    for i in (4, 0, 1, 2, 3):
        out += dma_ins(s, i)
        if i == 4: out.append(f"s_add_u32 s{S_SRC4}, s{S_SRC4}, s{S_INC4}")
    out.append(f"s_add_u32 s{S_SRCW}, s{S_SRCW}, 294912")
    return out
def x_group(T):
    out = []
    for i in range(4):
        out.append(("VM", f"buffer_load_dwordx4 {xfrag(T, i)}, v{V_X}, s[16:19], s{S_X+i} offen offset:{(T%4)*1024}", ("x", T)))
        if T % 4 == 3: out.append(f"s_add_u32 s{S_X+i}, s{S_X+i}, 4096")
    return out
def put(a, ins, pad=False):
    if isinstance(ins, tuple):
        if " lds" in ins[1] and a.lines[-1].startswith("s_add_u32 m0"): a("s_nop 0")
        a.vmem(ins[1], ins[2])
    elif ins.startswith("LABEL "): a.label(ins[6:])
    else:
        a(ins)

def frag_read_ins(n, tau, T):
    fb = A_F + 4 * (n % NB)
    slot = T % NR
    third, rem = slot // 3, (slot % 3) * STAGE
    if tau < 18:
        j, mat = tau // 2, tau % 2
        return [f"ds_read_b64_tr_b16 a[{fb+2*rho}:{fb+2*rho+1}], v{V_TR+third} offset:{rem + mat*UPOFF + rho*2304 + 32*j}" for rho in range(2)]
    return [f"ds_read_b128 a[{fb}:{fb+3}], v{V_FFB+third} offset:{rem+FFOFF+(tau-18)*1024}"]

def mfma(a, n, tau, T, i):
    fb = A_F + 4 * (n % NB); fr = f"a[{fb}:{fb+3}]"
    c = "0" if T == 0 else accr(tau, i)
    if tau < 18: a(f"v_mfma_f32_16x16x32_bf16 {accr(tau, i)}, {fr}, {xfrag(T, i)}, {c}")
    else:        a(f"v_mfma_f32_16x16x32_bf16 {accr(tau, i)}, {xfrag(T, i)}, {fr}, {c}")

def epi_glu(j, ip, setid):
    T = V_T + 8 * setid; U = V_T + 8 * (1 - setid); out = []
    for h in range(2):
        f, b = acc(2 * j, 2 * ip + h)
        for e in range(4):
            if f == "a":
                out.append(f"v_accvgpr_read_b32 v{T+4*h+e}, a{b+e}")
        for e in range(4):
            out.append(f"v_mul_f32 v{T+4*h+e}, s{S_K}, v{(T+4*h if f == 'a' else b)+e}")
    for e in range(8): out.append(f"v_exp_f32 v{T+e}, v{T+e}")
    for e in range(8): out.append(f"v_add_f32 v{T+e}, 1.0, v{T+e}")
    for e in range(8): out.append(f"v_rcp_f32 v{T+e}, v{T+e}")
    for h in range(2):
        f, b = acc(2 * j + 1, 2 * ip + h)
        if f == "a":
            for e in range(4): out.append(f"v_accvgpr_read_b32 v{U+4*h+e}, a{b+e}")
            b = U + 4 * h
        for e in range(4): out.append(f"v_mul_f32 v{T+4*h+e}, v{T+4*h+e}, v{b+e}")
    for i in range(4): out.append(f"v_cvt_pk_bf16_f32 v{T+i}, v{T+2*i}, v{T+2*i+1}")
    for h in range(2):
        out.append(f"s_add_u32 s{S_TMP}, s49, {(2*ip+h)*147456}")
        out.append(f"STORE buffer_store_dwordx2 v[{T+2*h}:{T+2*h+1}], v{V_H}, s[16:19], s{S_TMP} offen{HST}")
    return out

def epi_j_offset(j):
    return [f"s_add_u32 s55, s{S_FG}, {j}", "s_lshr_b32 s49, s55, 1", "s_lshl_b32 s49, s49, 10",
            "s_and_b32 s55, s55, 1", "s_lshl_b32 s55, s55, 3", "s_add_u32 s49, s49, s55"]

def epi_dft(tile):
    out = []
    for rb in range(2):
        T = V_T + 8 * rb
        for h in range(2):
            f, b = acc(18 + tile, 2 * rb + h)
            for e in range(4): out.append(f"v_accvgpr_read_b32 v{T+4*h+e}, a{b+e}")
        for i in range(4): out.append(f"v_cvt_pk_bf16_f32 v{T+i}, v{T+2*i}, v{T+2*i+1}")
        out.append(f"s_mov_b32 s{S_TMP}, {tile*0x200000}")
        out.append(f"STORE buffer_store_dwordx4 v[{T}:{T+3}], v{V_Y}, s[16:19], s{S_TMP} offen offset:{rb*16}{HST}")
    return out

def emit(a, ins):
    if ins.startswith("STORE "): a.vmem(ins[6:], ("st",))
    else: a(ins)

def wd_touch(first):
    out = []
    if first: out += ["s_mov_b32 s56, s96", "s_and_b32 s57, s97, 0xffff", f"s_mov_b32 s58, {SZ_G}", "s_mov_b32 s59, 0x20000"]
    out += [("VM", f"buffer_load_dword a{A_DUMMY+1}, v{V_WDT}, s[56:59], s100 offen", ("t", 99)), f"s_add_u32 s100, s100, {14*128}"]
    return out

def k1():
    a = Asm()
    stamp(a, 0)
    setup(a)
    stamp(a, 1)
    NPRO = 2
    for ins in x_group(0) + dma_group(0): put(a, ins)
    for ins in x_group(1) + dma_group(1): put(a, ins)
    nxt_w = NPRO; nxt_x = NPRO
    groups = [[2 * j, 2 * j + 1] for j in range(9)] + [[18]]
    order = [(tau, T) for T in range(NP1) for tau in range(20)]
    n_p1 = len(order)
    gstart = []
    for g in groups:
        gstart.append(len(order))
        order += [(tau, T) for T in range(NP1, NST) for tau in g]
    N = len(order)
    published = set()
    def publish(s):
        if s in published or s >= NST: return
        a.wait_vm([("w", s)])
        a("s_barrier"); published.add(s)
    def reads(n):
        if n >= N: return []
        tau, T = order[n]
        publish(T)
        return frag_read_ins(n, tau, T)
    publish(0)
    for n in range(LA):
        for r in reads(n): a.lds(r, ("f", n))
    bg = []
    def filler(k=1):
        for _ in range(k):
            if not bg: return
            ins = bg.pop(0)
            if isinstance(ins, str) and ins.startswith("STORE "): a.vmem(ins[6:], ("st",))
            else: put(a, ins)
    quota = 0.0
    setid = 0
    xwaited = set()
    for n, (tau, T) in enumerate(order):
        p1 = n < n_p1
        if p1 and tau == 0:
            if T in (9,): stamp(a, 2)
            publish(T + 1)
            assert not bg, bg
            for rep in range(ISSUE[T]):
                assert nxt_x <= T + PX and nxt_w <= T + PW
                bg += x_group(nxt_x); nxt_x += 1
                bg += dma_group(nxt_w); nxt_w += 1
            if 'nowt' in os.environ.get('EXP1', ''): pass
            elif T < 2:
                bg = [("VM", f"buffer_load_dword a{A_DUMMY}, v20, s[92:95], s99 offen", ("t", T)), f"s_add_u32 s99, s99, {3*294912}"] + bg
            elif T + TOUCH_AHEAD < NST:
                bg += [("VM", f"buffer_load_dword a{A_DUMMY}, v{V_TCH}, s[92:95], s98 offen", ("t", T)), "s_add_u32 s98, s98, 294912"]
            if T == 10 and 'nocode' not in os.environ.get('EXP1', ''): bg += ["s_lshr_b32 s55, s2, 3", "s_lshl_b32 s55, s55, 2", "s_add_u32 s55, s55, s52"] + touch_code_ins("k2_kernel", "k2_kernel_end", 128, 55, 16, 56, f"a{A_DUMMY+3}")
            dense = len(bg) > 19
        if not p1 and n in gstart:
            g = gstart.index(n)
            if g in (0, 1, 5): stamp(a, {0: 3, 1: 4, 5: 5}[g])
            if g >= 1:
                j = g - 1
                bg += epi_j_offset(j)
                for ip in range(2):
                    bg += epi_glu(j, ip, setid); setid ^= 1
            if 1 <= g <= 6 and 'nowd' not in os.environ.get('EXP1', ''): bg = wd_touch(g == 1) + bg
            nfr = len(groups[g]) * (NST - NP1)
            quota = len(bg) / (4.0 * nfr - 8); credit = -8 * quota
        if T not in xwaited:
            a.wait_vm([("x", T)]); xwaited.add(T)
        a.wait_lg([("f", n)])
        if p1 and tau == 19:
            a(f"s_cbranch_vccz K1_skip{T}")
            for i in range(4): mfma(a, n, tau, T, i)
            a.label(f"K1_skip{T}")
            for r in reads(n + LA): a.lds(r, ("f", n + LA))
            while bg: filler()
            continue
        rd = None
        for i in range(4):
            mfma(a, n, tau, T, i)
            if i == 0: rd = reads(n + LA)
            if i < len(rd): a.lds(rd[i], ("f", n + LA))
            if p1:
                if i == 1 and len(rd) < 2: filler()
                if i == 2: filler()
                if i == 3 and dense: filler()
            else:
                credit += quota
                while credit >= 1.0 and bg:
                    filler(); credit -= 1.0
        if not p1 and (n + 1 in gstart or n + 1 == N):
            while bg: filler()
    assert nxt_w == NST and nxt_x == NST
    a("s_nop 7")
    stamp(a, 6)
    for ins in epi_dft(0): emit(a, ins)
    a("s_cbranch_vccz K1_nob")
    nb = N
    seq = [(19, T) for T in range(NP1, NST)]
    for k, (tau, T) in enumerate(seq[:4]):
        for r in frag_read_ins(k, tau, T): a.lds(r, ("g", k))
    for k, (tau, T) in enumerate(seq):
        a.wait_lg([("g", k)])
        for i in range(4): mfma(a, k, tau, T, i)
        if k + 4 < len(seq):
            for r in frag_read_ins(k + 4, tau, seq[k + 4][1]): a.lds(r, ("g", k + 4))
    a("s_nop 7")
    for ins in epi_dft(1): emit(a, ins)
    a.label("K1_nob")
    stamps_out(a, 8, 1, 16, 16, s_wave=52)
    a.label("K1_exit")
    a("s_endpgm")
    return a

def spec():
    return dict(name="k1_kernel", asm=k1(), grid=256, block=256, lds=NR * STAGE, vgpr=512, accum=256, sgpr=102)
```
